```python
import torch

def _softmax(x, axis=-1):
    return torch.softmax(x, dim=axis)

def _gelu(x):
    return torch.nn.functional.gelu(x, approximate='tanh')

def _silu(x):
    return torch.nn.functional.silu(x)

def _sigmoid(x):
    return torch.sigmoid(x)

def _layernorm(x, axis=-1, eps=1e-05):
    m = x.mean(dim=axis, keepdim=True)
    v = x.var(dim=axis, keepdim=True, unbiased=False)
    return (x - m) / torch.sqrt(v + eps)

def _scatter_add(tgt, idx, src, axis=0):
    return tgt.clone().index_add_(axis, idx, src)

def _segment_sum(src, seg, n):
    out = torch.zeros((n,) + src.shape[1:], dtype=src.dtype)
    return out.index_add_(0, seg, src)

def _pad(x, pw):
    flat = tuple((v for pair in reversed(pw) for v in pair))
    return torch.nn.functional.pad(x, flat)
kernel_name = 'concat_heads__memory_aug_recurrent_mem_tr__ssm_conv_s5__prompt'

def setup_inputs():

    _w = lambda a: (lambda t: t.to(torch.bfloat16) if t.is_floating_point() else t)(torch.as_tensor(a))

    def _A_setup():
        B, S, Dm = (1, 2048, 640)
        H, Dh = (32, 128)
        M, seg = (8, 32)
        seg = min(seg, S)
        S = S // seg * seg
        return {'x': _w((lambda *s: torch.randn(*s, dtype=torch.bfloat16) * 0.05)(B, S, Dm)), 'mem0': _w((lambda *s: torch.randn(*s, dtype=torch.bfloat16) * 0.8)(B, M, Dm)), 'Wq': _w((lambda *s: torch.randn(*s, dtype=torch.bfloat16) * 1.6)(Dm, H, Dh) * Dm ** (-0.5)), 'Wk': _w((lambda *s: torch.randn(*s, dtype=torch.bfloat16) * 1.6)(Dm, H, Dh) * Dm ** (-0.5)), 'Wv': _w((lambda *s: torch.randn(*s, dtype=torch.bfloat16) * 0.8)(Dm, H, Dh) * Dm ** (-0.5)), 'Wo': _w((lambda *s: torch.randn(*s, dtype=torch.bfloat16) * 0.8)(H, Dh, Dm) * (H * Dh) ** (-0.5)), 'seg_len': seg}
    _A_in = _A_setup()

    def _B_setup():
        B, S, D = (1, 2048, 640)
        P = D
        Lambda_re = -0.5 * (lambda _x: torch.exp(torch.as_tensor(_x)))((lambda *s: torch.randn(*s, dtype=torch.bfloat16) * 0.8)(P))
        Lambda_im = (lambda *s: torch.randn(*s, dtype=torch.bfloat16) * 0.8)(P) * 1.0
        B_re = (lambda *s: torch.randn(*s, dtype=torch.bfloat16) * 0.8)(P, D) * D ** (-0.5)
        B_im = (lambda *s: torch.randn(*s, dtype=torch.bfloat16) * 0.8)(P, D) * D ** (-0.5)
        C_re = (lambda *s: torch.randn(*s, dtype=torch.bfloat16) * 0.8)(D, P) * P ** (-0.5)
        C_im = (lambda *s: torch.randn(*s, dtype=torch.bfloat16) * 0.8)(D, P) * P ** (-0.5)
        log_dt = (lambda *s: torch.randn(*s, dtype=torch.bfloat16) * 0.8)(P) * 0.3 - 2.0
        Dskip = (lambda *s: torch.randn(*s, dtype=torch.bfloat16) * 0.8)(D)
        return {'x': _w((lambda *s: torch.randn(*s, dtype=torch.bfloat16) * 0.05)(B, S, D)), 'Lambda_re': _w(Lambda_re), 'Lambda_im': _w(Lambda_im), 'B_re': _w(B_re), 'B_im': _w(B_im), 'C_re': _w(C_re), 'C_im': _w(C_im), 'log_dt': _w(log_dt), 'Dskip': _w(Dskip)}
    _B_in = _B_setup()
    return {'A_x': _A_in['x'], 'A_mem0': _A_in['mem0'], 'A_Wq': _A_in['Wq'], 'A_Wk': _A_in['Wk'], 'A_Wv': _A_in['Wv'], 'A_Wo': _A_in['Wo'], 'A_seg_len': _A_in['seg_len'], 'B_x': _B_in['x'], 'B_Lambda_re': _B_in['Lambda_re'], 'B_Lambda_im': _B_in['Lambda_im'], 'B_B_re': _B_in['B_re'], 'B_B_im': _B_in['B_im'], 'B_C_re': _B_in['C_re'], 'B_C_im': _B_in['C_im'], 'B_log_dt': _B_in['log_dt'], 'B_Dskip': _B_in['Dskip']}

def reference(A_x, A_mem0, A_Wq, A_Wk, A_Wv, A_Wo, A_seg_len, B_x, B_Lambda_re, B_Lambda_im, B_B_re, B_B_im, B_C_re, B_C_im, B_log_dt, B_Dskip):

    def _A_ref(x, mem0, Wq, Wk, Wv, Wo, seg_len):
        B, S, Dm = x.shape
        H, Dh = (Wq.shape[1], Wq.shape[2])
        M = mem0.shape[1]
        scale = Dh ** (-0.5)
        n_seg = S // seg_len
        L = M + seg_len
        idx = torch.arange(L)
        mask = (idx[:, None] < M) | (idx[:, None] >= idx[None, :])
        mem = mem0
        outs = []
        for s in range(n_seg):
            xs = x[:, s * seg_len:(s + 1) * seg_len, :].clone()
            h = torch.concatenate([mem, xs], axis=1)
            q = torch.einsum('btd,dhe->bhte', h, Wq)
            k = torch.einsum('btd,dhe->bhte', h, Wk)
            v = torch.einsum('btd,dhe->bhte', h, Wv)
            scores = torch.einsum('bhqe,bhke->bhqk', q, k) * scale
            scores = torch.where(mask[None, None], scores, -1000000000.0)
            p = _softmax(scores, axis=-1)
            o = torch.einsum('bhqk,bhke->bhqe', p, v)
            o = torch.einsum('bhte,hed->btd', o, Wo)
            mem = o[:, :M, :].clone()
            outs.append(o[:, M:, :])
        return torch.concatenate(outs, axis=1)

    def _B_ref(x, Lambda_re, Lambda_im, B_re, B_im, C_re, C_im, log_dt, Dskip):
        Bsz, L, H = x.shape
        Lam = Lambda_re + 1j * Lambda_im
        Bmat = B_re + 1j * B_im
        Cmat = C_re + 1j * C_im
        dt = torch.exp(log_dt)
        Lam_bar = torch.exp(dt * Lam)
        B_bar = ((Lam_bar - 1.0) / Lam)[:, None] * Bmat
        Bu = torch.einsum('bld,pd->blp', x + 0j, B_bar)
        h = torch.zeros_like(Bu[:, 0, :])
        hs = []
        for t in range(L):
            h = Lam_bar[None, :] * h + Bu[:, t, :]
            hs.append(h)
        hseq = torch.stack(hs, 1)
        y = 2.0 * torch.einsum('blp,dp->bld', hseq, Cmat).real + x * Dskip[None, None, :]
        return y
    a = _A_ref(A_x, A_mem0, A_Wq, A_Wk, A_Wv, A_Wo, A_seg_len)
    b = _B_ref(B_x, B_Lambda_re, B_Lambda_im, B_B_re, B_B_im, B_C_re, B_C_im, B_log_dt, B_Dskip)
    return torch.concatenate([a, b], axis=-1)
```

```python
import re

_REG = re.compile(r'(?<![\w.])([vas])(?:\[(\d+):(\d+)\]|(\d+))(?![\w])')

def regs_of(tok):
    out = set()
    for m in _REG.finditer(tok):
        f = m.group(1)
        if m.group(2) is not None:
            for i in range(int(m.group(2)), int(m.group(3)) + 1): out.add((f, i))
        else:
            out.add((f, int(m.group(4))))
    if re.search(r'\bvcc\b', tok): out.add(('s', 'vcc'))
    if re.search(r'\bexec\b', tok): out.add(('s', 'exec'))
    if re.search(r'\bm0\b', tok): out.add(('s', 'm0'))
    return out

def split_ops(s):
    ops, depth, cur = [], 0, ''
    for ch in s:
        if ch == '[': depth += 1
        if ch == ']': depth -= 1
        if ch == ',' and depth == 0:
            ops.append(cur.strip()); cur = ''
        else: cur += ch
    if cur.strip(): ops.append(cur.strip())
    return ops

TRANS = ('v_exp_f32', 'v_log_f32', 'v_rcp_f32', 'v_rsq_f32', 'v_sqrt_f32', 'v_sin_f32', 'v_cos_f32')

class I:
    __slots__ = ('text', 'mn', 'kind', 'dst', 'src', 'passes', 'srcC', 'srcAB', 'ws', 'dpp', 'wide_store_data', 'lds_dma')

def classify(text):
    t = text.strip()
    i = I(); i.text = t
    mn, _, rest = t.partition(' ')
    i.mn = mn; i.dst = set(); i.src = set(); i.passes = 0; i.srcC = set(); i.srcAB = set(); i.ws = 1
    i.dpp = ('row_' in rest or 'quad_perm' in rest); i.wide_store_data = set(); i.lds_dma = False
    ops = split_ops(rest)
    if mn == 's_nop':
        i.kind = 'nop'; i.ws = int(rest.strip(), 0) + 1; return i
    if mn.startswith('v_mfma') or mn.startswith('v_smfmac'):
        i.kind = 'mfma'
        i.dst = regs_of(ops[0]); i.srcAB = regs_of(ops[1]) | regs_of(ops[2])
        if mn.startswith('v_smfmac'):
            i.srcC = set(i.dst); i.srcAB |= regs_of(ops[3].split()[0])
        else:
            i.srcC = regs_of(ops[3].split()[0])
        i.src = i.srcAB | i.srcC
        i.passes = 8 if '32x32' in mn else (2 if '4x4x4' in mn else 4)
        return i
    if mn.startswith('v_'):
        i.kind = 'trans' if any(mn.startswith(x) for x in TRANS) else 'valu'
        nd = 1
        if mn.startswith('v_cmp'):
            i.dst = regs_of(ops[0])
            if mn.endswith('_e32') or True: pass
        else:
            i.dst = regs_of(ops[0])
            if '_co_' in mn and len(ops) > 1:
                i.dst |= regs_of(ops[1]); nd = 2
        for o in ops[nd:]: i.src |= regs_of(o)
        if mn.startswith(('v_permlane16_swap', 'v_permlane32_swap')):
            i.dst |= regs_of(ops[1]); i.src |= regs_of(ops[0]); i.kind = 'perm'
        if mn.startswith(('v_fmac', 'v_pk_fmac', 'v_dot2c', 'v_writelane', 'v_accvgpr_mov')) or i.dpp:
            i.src |= regs_of(ops[0])
        if mn.startswith('v_cndmask') and len(ops) == 3: i.src.add(('s', 'vcc'))
        if mn.startswith(('v_readfirstlane', 'v_readlane')): i.kind = 'rdlane'
        return i
    if mn.startswith('ds_'):
        i.kind = 'ds'
        if mn.startswith(('ds_read', 'ds_bpermute', 'ds_permute', 'ds_swizzle')):
            i.dst = regs_of(ops[0])
            for o in ops[1:]: i.src |= regs_of(o)
        else:
            for o in ops: i.src |= regs_of(o)
        return i
    if mn.startswith(('buffer_', 'global_', 'flat_')):
        i.kind = 'vmem'
        lds = re.search(r'\blds\b', rest) is not None or '_lds_' in mn
        i.lds_dma = lds
        if mn.startswith(('buffer_inv', 'buffer_wbl2')): return i
        if 'load' in mn and not lds:
            i.dst = regs_of(ops[0])
            for o in ops[1:]: i.src |= regs_of(o)
        elif 'atomic' in mn:
            for o in ops: i.src |= regs_of(o)
            if re.search(r'\bsc0\b', rest): i.dst = regs_of(ops[0])
        else:
            for o in ops: i.src |= regs_of(o)
            if 'store' in mn and ('x3' in mn or 'x4' in mn):
                i.wide_store_data = regs_of(ops[0]) if mn.startswith('buffer_') else regs_of(ops[1])
        if lds: i.src.add(('s', 'm0'))
        return i
    if mn.startswith('s_'):
        i.kind = 'salu'
        if mn.startswith(('s_cmp', 's_cbranch', 's_branch', 's_waitcnt', 's_barrier', 's_endpgm', 's_sleep', 's_setprio', 's_bitcmp')):
            for o in ops: i.src |= regs_of(o)
        else:
            if ops: i.dst = regs_of(ops[0])
            for o in ops[1:]: i.src |= regs_of(o)
            if 'saveexec' in mn: i.dst.add(('s', 'exec'))
        return i
    raise ValueError('cannot classify: ' + text)

def vregs(s): return {r for r in s if r[0] in 'va'}
def sregs(s): return {r for r in s if r[0] == 's'}

def need(p, c):
    n = 0
    pv = vregs(p.dst)
    if p.kind in ('valu', 'trans', 'perm', 'rdlane'):
        if c.kind == 'mfma' and pv & c.src: n = max(n, 2)
        if c.kind == 'perm' and pv & c.src: n = max(n, 2)
        if c.dpp and pv & c.src: n = max(n, 2)
        if c.kind == 'rdlane' and pv & vregs(c.src): n = max(n, 1)
        if p.kind == 'trans' and c.kind in ('valu', 'perm', 'rdlane', 'mfma') and pv & c.src: n = max(n, 1)
        if p.mn.startswith('v_dot'):
            if c.mn != p.mn:
                if pv & (vregs(c.src) | vregs(c.dst)): n = max(n, 3)
            else:
                ops_ab = getattr(c, 'srcAB', set())
                if pv & (vregs(c.src) - vregs(c.dst)): n = max(n, 3)
        ps = sregs(p.dst)
        if ps:
            if c.kind in ('valu', 'trans', 'perm') and ps & sregs(c.src): n = max(n, 2)
            if c.kind == 'rdlane' and ps & sregs(c.src): n = max(n, 4)
            if c.kind == 'vmem' and ps & sregs(c.src): n = max(n, 5)
            if ('s', 'exec') in ps and c.kind == 'mfma': n = max(n, 4)
    if p.kind == 'mfma':
        P = p.passes
        full = {2: 5, 4: 8, 8: 12, 16: 20}[P]
        part = {2: 4, 4: 6, 8: 10, 16: 18}[P]
        if c.kind == 'mfma':
            if pv & c.srcAB: n = max(n, full)
            if pv & c.srcC:
                if not (pv == c.srcC and c.passes == P): n = max(n, part)
                elif P == 2: n = max(n, 2)
            elif pv & c.dst and not (pv == c.dst):
                n = max(n, part)
        else:
            if pv & (vregs(c.src) | vregs(c.dst)): n = max(n, full)
            war = {2: 1, 4: 3, 8: 7, 16: 15}[P]
            if c.kind in ('valu', 'trans', 'perm') and vregs(p.srcC) & vregs(c.dst): n = max(n, war)
    if p.kind == 'salu' and ('s', 'm0') in p.dst and c.lds_dma: n = max(n, 1)
    if p.wide_store_data and c.kind in ('valu', 'trans', 'perm', 'rdlane') and p.wide_store_data & vregs(c.dst): n = max(n, 2)
    if p.wide_store_data and c.kind in ('ds', 'vmem', 'mfma') and p.wide_store_data & vregs(c.dst): n = max(n, 1)
    return n

class Asm:
    def __init__(self):
        self.lines = []; self.hist = []; self.nops = 0; self.uid = 0
    def raw(self, s):
        self.lines.append(s)
    def c(self, s):
        self.lines.append('; ' + s)
    def label(self, name):
        self.lines.append(name + ':')
    def newlabel(self, base):
        self.uid += 1
        return f'{base}_{self.uid}'
    def flush(self, n=None):
        self.hist = []
    def __call__(self, text):
        for ln in text.strip().split('\n'):
            ln = ln.strip()
            if not ln: continue
            if ln.startswith(';'):
                self.lines.append(ln); continue
            if ln.endswith(':'):
                self.label(ln[:-1]); continue
            code = ln.split(';')[0].strip()
            ins = classify(code)
            if ins.kind != 'nop':
                req = 0; dist = 0; tdist = 0; seen_mfma = False
                for p in reversed(self.hist):
                    r = need(p, ins)
                    d = max(dist, tdist) if p.kind == 'mfma' else dist
                    if r > d: req = max(req, r - d)
                    dist += p.ws
                    if p.kind == 'mfma':
                        tdist += p.passes; seen_mfma = True
                    elif not seen_mfma:
                        tdist += p.ws
                    if dist >= 24: break
                while req > 0:
                    k = min(req, 16)
                    nop = classify(f's_nop {k-1}')
                    self.lines.append(f'    s_nop {k-1}'); self.hist.append(nop); self.nops += 1
                    req -= k
            self.lines.append('    ' + ln)
            self.hist.append(ins)
            if len(self.hist) > 40: self.hist = self.hist[-30:]
    def text(self):
        return '\n'.join(self.lines) + '\n'

def vr(base, n=1):
    return f'v{base}' if n == 1 else f'v[{base}:{base+n-1}]'
def ar(base, n=1):
    return f'a{base}' if n == 1 else f'a[{base}:{base+n-1}]'
def sr(base, n=1):
    return f's{base}' if n == 1 else f's[{base}:{base+n-1}]'
```

```python
from asm import *
from layout import *

V_L16=1; V_T4=2; V_IDX=3; V_PST=4; V_PLD=5; V_MPUB=6; V_IMGW=7; V_IMGR=8; V_OW=9; V_OR=10
V_KXR=11; V_VXR=12; V_FLAG=13; V_T0=14; V_T1=15; V_T2=16; V_T3=17; V_ONELO=18; V_ONEHI=19
V_A=20
V_F=20
V_RL=20
V_AG=44
V_K=60; V_Q=64; V_V=68
V_DO=72
V_XS=84; V_XSV=88; V_XO=90; V_XOV=91; V_XR=92; V_XRV=96; V_VMST=98; V_T5=99; V_SENT=100
V_SEL=104; V_RD=108
V_KX=112; V_O=[112,116]; V_AO=120; V_VX=144
V_SM=152; V_S0=156; V_S1=160; V_P1=164; V_P2=168; V_VM=[170,172]; V_MX=174; V_SUM=175
V_MR=V_KXR
V_AR=99
def BW(m,jj): return ('a', (m*10+jj)*8)
def BO(p,jj):
    i=p*4+jj
    return ('a',240+8*i) if i<2 else ('v',176+8*(i-2))
def R(f,n): return f'{f[0]}[{f[1]}:{f[1]+n-1}]'
def Rp(f,off,n=2): return f'{f[0]}[{f[1]+off}:{f[1]+off+n-1}]'

S_WS=8; S_TMP=12
S_STEP=16; S_H=17; S_X=18; S_W=19
S_MCUR=20; S_MNXT=22; S_MRST=23; S_XW=24; S_XR=25; S_TAG=26; S_SPIN=27
S_MO=28; S_MP=30; S_C=32
S_KVB=35; S_KVW=36; S_SEG=37; S_T0=38; S_T1=39; S_T2=40; S_T3=41
S_XBASE=42; S_PAR=43; S_MBASE=44; S_KMOFF=45; S_VMOFF=46; S_FLM=47; S_HASRS=48
S_P1=50; S_P2=51; S_DBG=52
S_XW0=70; S_XR0=71; S_KO=72; S_PUBO=76; S_AG1=77; S_AG2=78
WSR=f's[{S_WS}:{S_WS+3}]'

L_IMG=0; L_OIMG=4096; OP=272; L_VMST=6400; L_MI=8704; MP_=672; L_KV=16384
WO_NP=[3,3,2,2]
NUNIT=40

ABS=[None]
def stamp(a,k,on):
    if not on: return
    a('s_memrealtime s[56:57]' if ABS[0] is not None else 's_memtime s[56:57]')
    a('s_waitcnt lgkmcnt(0)')
    if ABS[0] is not None:
        a(f's_cmp_eq_u32 s{S_STEP}, {ABS[0]}')
        a(f's_cselect_b32 s{60+k}, s56, s{60+k}')
        return
    a('s_sub_u32 s59, s56, s58')
    a(f's_add_u32 s{60+k}, s{60+k}, s59')
    a('s_mov_b32 s58, s56')
def count(a,k,on):
    if on: a(f's_add_u32 s{92+k}, s{92+k}, 1')
def delay(a,cyc):
    for _ in range(cyc//16): a('s_nop 3')

AG={0:[128],1:[0,64,256],2:[192],3:[]}
AG_MW={0:[V_T5],1:[V_T5,V_PLD,V_MPUB],2:[V_T5],3:[]}

def chain_prologue(a, cfg):
    a(f'''
    v_lshrrev_b32 v{V_T1}, 6, v0
    v_and_b32 v{V_T0}, 63, v0
    v_lshlrev_b32 v{V_L16}, 4, v{V_T0}
    v_readfirstlane_b32 s{S_W}, v{V_T1}
    s_load_dwordx2 s[4:5], s[0:1], {KA['ws']}
    s_load_dwordx2 s[6:7], s[0:1], {KA['dbg']}
    s_waitcnt lgkmcnt(0)
    s_mov_b32 s{S_WS}, s4
    s_mov_b32 s{S_WS+1}, s5
    s_mov_b32 s{S_WS+2}, {WS_SIZE}
    s_mov_b32 s{S_WS+3}, 0x20000
    s_mov_b32 s{S_DBG}, s6
    s_mov_b32 s{S_DBG+1}, s7
    s_mov_b32 s{S_DBG+2}, 256
    s_mov_b32 s{S_DBG+3}, 0x20000
    s_sub_u32 s{S_T0}, 0, s4
    s_and_b32 s{S_T0}, s{S_T0}, 0x1fffff
    s_add_u32 s{S_XBASE}, s{S_T0}, {WS_X}
    s_mov_b32 s{S_PAR}, {cfg['par']*8192}
    s_lshl_b32 s{S_T0}, s{S_X}, 15
    s_add_u32 s{S_MBASE}, s{S_T0}, {WS_M}
    s_mov_b32 s{S_MO}, 0xcccccccc
    s_mov_b32 s{S_MO+1}, 0xcccccccc
    s_mov_b32 s{S_MP}, 0x00550055
    s_mov_b32 s{S_MP+1}, 0x00550055
    s_mov_b32 s{S_C}, 0x3e0293ee            ; 128^-0.5 * log2(e)
    s_mov_b32 s{S_C+1}, 0x3e0293ee
    s_mov_b32 s{S_SPIN}, {cfg['spin']}
    v_mov_b32 v{V_SENT}, -1
    v_mov_b32 v{V_SENT+1}, -1
    v_mov_b32 v{V_SENT+2}, -1
    v_mov_b32 v{V_SENT+3}, -1
    v_mov_b32 v{V_ONELO}, 0x3f80
    v_mov_b32 v{V_ONEHI}, 0x3f800000
    v_and_b32 v{V_T1}, 15, v{V_T0}           ; n
    v_lshrrev_b32 v{V_T2}, 4, v{V_T0}        ; g
    v_mov_b32 v{V_IDX}, 0x4444
    v_mov_b32 v{V_T3}, 0xeeee
    v_cmp_lt_u32 vcc, 7, v{V_T1}
    v_cndmask_b32 v{V_IDX}, v{V_IDX}, v{V_T3}, vcc
    v_and_b32 v{V_T3}, 1, v{V_T1}
    v_cmp_eq_u32 vcc, 1, v{V_T3}
    v_cndmask_b32 v{V_T4}, v{V_ONELO}, v{V_ONEHI}, vcc
    v_and_b32 v{V_T3}, 2, v{V_T1}
    v_cmp_eq_u32 vcc, 0, v{V_T3}
    v_cndmask_b32 v{V_T4}, 0, v{V_T4}, vcc
    v_lshrrev_b32 v{V_T3}, 2, v{V_T1}
    ''')
    for q in range(4):
        a(f'v_cmp_eq_u32 vcc, {q}, v{V_T3}')
        a(f'v_cndmask_b32 v{V_SEL+q}, 0, v{V_T4}, vcc')
    a(f'''
    s_mul_i32 s{S_T0}, s{S_W}, 96
    s_min_u32 s{S_T0}, s{S_T0}, 256
    v_lshrrev_b32 v{V_T3}, 1, v{V_T2}
    v_lshl_add_u32 v{V_T3}, v{V_T3}, 4, v{V_T1}
    v_add_u32 v{V_T3}, s{S_T0}, v{V_T3}           ; c
    v_lshrrev_b32 v{V_T4}, 3, v{V_T3}
    v_lshlrev_b32 v{V_PST}, 12, v{V_T4}
    v_and_b32 v{V_T4}, 7, v{V_T3}
    v_lshl_add_u32 v{V_PST}, v{V_T4}, 4, v{V_PST}
    v_and_b32 v{V_T4}, 1, v{V_T2}
    v_lshl_add_u32 v{V_PST}, v{V_T4}, 3, v{V_PST}
    s_mul_i32 s{S_T0}, s{S_X}, {NUNIT*4096}
    s_lshl_b32 s{S_T1}, s{S_H}, 7
    s_add_u32 s{S_T0}, s{S_T0}, s{S_T1}
    s_add_u32 s{S_T0}, s{S_T0}, {WS_P}
    v_add_u32 v{V_PST}, s{S_T0}, v{V_PST}
    s_mov_b32 s{S_P1}, {4*4096}
    s_mov_b32 s{S_P2}, {8*4096}
    s_add_u32 s{S_T0}, s{S_H}, 32
    s_cmp_eq_u32 s{S_W}, 2
    s_cselect_b32 s{S_T0}, s{S_H}, s{S_T0}
    s_cmp_lt_u32 s{S_T0}, {NUNIT}
    s_cselect_b32 s{S_HASRS}, 1, 0
    s_and_b32 s{S_T1}, s{S_W}, 1
    s_cmp_eq_u32 s{S_T1}, 1
    s_cselect_b32 s{S_HASRS}, 0, s{S_HASRS}
    s_min_u32 s{S_T0}, s{S_T0}, {NUNIT-1}
    s_mul_i32 s{S_T1}, s{S_X}, {NUNIT}
    s_add_u32 s{S_T1}, s{S_T1}, s{S_T0}
    s_lshl_b32 s{S_T1}, s{S_T1}, 12
    s_add_u32 s{S_T1}, s{S_T1}, {WS_P}
    v_add_u32 v{V_PLD}, s{S_T1}, v{V_L16}
    v_mul_u32_u24 v{V_MPUB}, 1280, v{V_T2}
    v_and_b32 v{V_T3}, 7, v{V_T1}
    v_lshl_add_u32 v{V_MPUB}, v{V_T3}, 1, v{V_MPUB}
    s_lshl_b32 s{S_T1}, s{S_T0}, 4
    v_add_u32 v{V_MPUB}, s{S_T1}, v{V_MPUB}
    s_lshl_b32 s{S_T0}, s{S_W}, 10
    v_lshrrev_b32 v{V_T3}, 1, v{V_T2}
    v_lshl_add_u32 v{V_T3}, v{V_T3}, 4, v{V_T1}
    v_lshlrev_b32 v{V_IMGW}, 5, v{V_T3}
    v_add_u32 v{V_IMGW}, s{S_T0}, v{V_IMGW}
    v_lshrrev_b32 v{V_T3}, 2, v{V_T1}
    v_xor_b32 v{V_T3}, v{V_T3}, v{V_T2}
    v_and_b32 v{V_T3}, 1, v{V_T3}
    v_lshl_add_u32 v{V_IMGW}, v{V_T3}, 4, v{V_IMGW}
    v_lshrrev_b32 v{V_T3}, 2, v{V_T1}
    v_lshl_add_u32 v{V_T3}, v{V_T2}, 2, v{V_T3}
    v_lshlrev_b32 v{V_IMGR}, 5, v{V_T3}
    v_lshrrev_b32 v{V_T3}, 1, v{V_T1}
    v_xor_b32 v{V_T3}, v{V_T3}, v{V_T2}
    v_and_b32 v{V_T3}, 1, v{V_T3}
    v_lshl_add_u32 v{V_IMGR}, v{V_T3}, 4, v{V_IMGR}
    v_and_b32 v{V_T3}, 1, v{V_T1}
    v_lshl_add_u32 v{V_IMGR}, v{V_T3}, 3, v{V_IMGR}
    v_lshrrev_b32 v{V_T3}, 2, v{V_T1}
    v_and_b32 v{V_T4}, 1, v{V_T1}
    v_lshl_add_u32 v{V_T4}, v{V_T3}, 1, v{V_T4}
    v_mul_u32_u24 v{V_OW}, {OP}, v{V_T4}
    v_lshl_add_u32 v{V_OW}, v{V_T2}, 3, v{V_OW}
    s_lshl_b32 s{S_T0}, s{S_W}, 6
    s_add_u32 s{S_T0}, s{S_T0}, {L_OIMG}
    v_add_u32 v{V_OW}, s{S_T0}, v{V_OW}
    v_and_b32 v{V_T3}, 7, v{V_T1}
    v_mul_u32_u24 v{V_OR}, {OP}, v{V_T3}
    v_lshl_add_u32 v{V_OR}, v{V_T2}, 4, v{V_OR}
    v_add_u32 v{V_OR}, {L_OIMG}, v{V_OR}
    ; X offsets
    s_lshr_b32 s{S_T0}, s{S_W}, 1
    s_lshl_b32 s{S_T0}, s{S_T0}, 14
    s_and_b32 s{S_T1}, s{S_W}, 1
    s_lshl_b32 s{S_T1}, s{S_T1}, 12
    s_add_u32 s{S_T0}, s{S_T0}, s{S_T1}
    v_add_u32 v{V_XO}, s{S_T0}, v{V_L16}
    s_add_u32 s{S_T1}, s{S_T0}, 1024
    v_lshlrev_b32 v{V_T3}, 3, v{V_T0}
    v_add_u32 v{V_XOV}, s{S_T1}, v{V_T3}
    s_lshl_b32 s{S_T0}, s{S_W}, 9
    s_add_u32 s{S_T1}, s{S_T0}, {L_VMST}
    v_add_u32 v{V_VMST}, s{S_T1}, v{V_T3}
    v_mov_b32 v{V_P2+1}, 0
    v_mov_b32 v{V_VM[0]+1}, 0
    v_mov_b32 v{V_VM[1]+1}, 0
    ''')
    a.c('init inboxes')
    lab=a.newlabel('L_noPinit')
    a(f's_cmp_eq_u32 s{S_HASRS}, 0\ns_cbranch_scc1 {lab}')
    for i in range(4):
        a(f'buffer_store_dwordx4 v[{V_SENT}:{V_SENT+3}], v{V_PLD}, {WSR}, 0 offen offset:{1024*i}')
    a(f'{lab}:')
    a(f'''
    s_lshl_b32 s{S_T0}, s{S_H}, 1
    s_xor_b32 s{S_T1}, s{S_X}, 1
    s_add_u32 s{S_T1}, s{S_T0}, s{S_T1}
    s_lshl_b32 s{S_T1}, s{S_T1}, 15
    s_add_u32 s{S_XR}, s{S_T1}, s{S_XBASE}
    s_add_u32 s{S_T1}, s{S_T0}, s{S_X}
    s_lshl_b32 s{S_T1}, s{S_T1}, 15
    s_add_u32 s{S_XW}, s{S_T1}, s{S_XBASE}
    ''')
    for k in range(4):
        a(f's_add_u32 s{S_T0}, s{S_XR}, {(k>>1)*8192+(k&1)*2048}')
        a(f'buffer_store_dwordx4 v[{V_SENT}:{V_SENT+3}], v{V_XO}, {WSR}, s{S_T0} offen sc1')
        a(f'buffer_store_dwordx2 v[{V_SENT}:{V_SENT+1}], v{V_XOV}, {WSR}, s{S_T0} offen sc1')
    a(f'''
    s_mov_b32 s{S_XR0}, s{S_XR}
    s_mov_b32 s{S_XW0}, s{S_XW}
    ''')
    lab=a.newlabel('L_noMinit')
    a(f'''
    s_cmp_lg_u32 s{S_W}, 3
    s_cbranch_scc1 {lab}
    s_cmp_ge_u32 s{S_H}, 5
    s_cbranch_scc1 {lab}
    s_load_dwordx2 s[4:5], s[0:1], {KA['A_mem0']}
    s_waitcnt lgkmcnt(0)
    s_mov_b32 s{S_TMP}, s4
    s_mov_b32 s{S_TMP+1}, s5
    s_mov_b32 s{S_TMP+2}, 10240
    s_mov_b32 s{S_TMP+3}, 0x20000
    s_lshl_b32 s{S_T1}, s{S_H}, 6
    v_add_u32 v{V_T3}, s{S_T1}, v{V_T0}          ; ci
    v_mul_u32_u24 v{V_T4}, 52429, v{V_T3}
    v_lshrrev_b32 v{V_T4}, 21, v{V_T4}           ; t = ci/40
    v_mul_u32_u24 v{V_T5}, 40, v{V_T4}
    v_sub_u32 v{V_T5}, v{V_T3}, v{V_T5}          ; u
    v_mul_u32_u24 v{V_T4}, 1280, v{V_T4}
    v_lshl_add_u32 v{V_T4}, v{V_T5}, 4, v{V_T4}
    s_mul_i32 s{S_T0}, s{S_X}, 640
    buffer_load_dwordx4 v[{V_A}:{V_A+3}], v{V_T4}, s[{S_TMP}:{S_TMP+3}], s{S_T0} offen
    s_lshl_b32 s{S_T1}, s{S_H}, 10
    s_add_u32 s{S_T1}, s{S_T1}, s{S_MBASE}
    s_add_u32 s{S_T2}, s{S_T1}, 8192
    s_add_u32 s{S_T3}, s{S_T1}, 16384
    buffer_store_dwordx4 v[{V_SENT}:{V_SENT+3}], v{V_L16}, {WSR}, s{S_T2} offen
    buffer_store_dwordx4 v[{V_SENT}:{V_SENT+3}], v{V_L16}, {WSR}, s{S_T3} offen
    s_waitcnt vmcnt(2)
    buffer_store_dwordx4 v[{V_A}:{V_A+3}], v{V_L16}, {WSR}, s{S_T1} offen
    {lab}:
    s_waitcnt vmcnt(0)
    s_barrier
    ''')
    lab=a.newlabel('L_noinit')
    a(f'''
    s_cmp_lg_u32 s{S_W}, 0
    s_cbranch_scc1 {lab}
    v_mov_b32 v{V_T3}, {DBG_INIT}
    v_mov_b32 v{V_T4}, 1
    s_mov_b64 exec, 1
    buffer_atomic_add v{V_T4}, v{V_T3}, s[{S_DBG}:{S_DBG+3}], 0 offen
    s_mov_b64 exec, -1
    {lab}:
    ''')

def chain_weights(a, cfg):
    a.c('---- weights: stage through LDS with DMA, transpose-read into registers ----')
    VA=V_A; VB=V_A+1; VC=V_A+2; VD=V_A+3
    a(f'''
    s_mul_i32 s{S_T2}, s{S_W}, 40960
    v_lshrrev_b32 v{V_T3}, 2, v{V_T0}
    v_lshlrev_b32 v{V_T3}, 13, v{V_T3}
    v_and_b32 v{V_T4}, 3, v{V_T0}
    v_lshl_add_u32 v{V_T3}, v{V_T4}, 4, v{V_T3}
    s_mul_i32 s{S_T0}, s{S_X}, {320*8192}
    s_lshl_b32 s{S_T1}, s{S_H}, 8
    s_add_u32 s{S_T0}, s{S_T0}, s{S_T1}
    s_lshl_b32 s{S_T1}, s{S_W}, 6
    s_add_u32 s{S_T0}, s{S_T0}, s{S_T1}
    v_lshrrev_b32 v{V_T4}, 1, v{V_T2}
    v_lshlrev_b32 v{V_T4}, 3, v{V_T4}
    v_and_b32 v{V_T5}, 1, v{V_T2}
    v_lshl_add_u32 v{V_T4}, v{V_T5}, 2, v{V_T4}
    v_bfe_u32 v{V_T5}, v{V_T1}, 2, 1
    v_add_u32 v{VC}, v{V_T4}, v{V_T5}               ; row
    v_bfe_u32 v{V_T5}, v{V_T1}, 3, 1
    v_lshlrev_b32 v{V_T4}, 5, v{V_T5}
    v_and_b32 v{V_T5}, 3, v{V_T1}
    v_lshl_add_u32 v{VD}, v{V_T5}, 3, v{V_T4}
    v_lshl_add_u32 v{VA}, v{VC}, 6, v{VD}
    v_add_u32 v{VB}, s{S_T2}, v{VA}
    ''')
    def srd(name,size):
        a(f'''
        s_load_dwordx2 s[4:5], s[0:1], {KA[name]}
        s_waitcnt lgkmcnt(0)
        s_mov_b32 s{S_TMP}, s4
        s_mov_b32 s{S_TMP+1}, s5
        s_mov_b32 s{S_TMP+2}, {size}
        s_mov_b32 s{S_TMP+3}, 0x20000
        ''')
    def dma_w(ldsoff):
        for i in range(20):
            a(f's_add_u32 m0, s{S_T2}, {ldsoff+1024*i}')
            a(f's_add_u32 s{S_T1}, s{S_T0}, {i*16*8192}')
            a(f'buffer_load_dwordx4 v{V_T3}, s[{S_TMP}:{S_TMP+3}], s{S_T1} offen lds')
    def tr_w(m,ldsoff,vaddr):
        for jj in range(10):
            f=BW(m,jj)
            for i in range(4):
                off=ldsoff+(32*jj+16*(i>>1)+2*(i&1))*64
                a(f'ds_read_b64_tr_b16 {Rp(f,2*i)}, v{vaddr} offset:{off}')
    WSZ=640*8192
    srd('Wq',WSZ); dma_w(0)
    srd('Wk',WSZ); dma_w(20480)
    a('s_waitcnt vmcnt(20)')
    tr_w(0,0,VB)
    a('s_waitcnt vmcnt(0)')
    tr_w(1,20480,VB)
    a('s_waitcnt lgkmcnt(0)')
    a('s_barrier')
    a(f'''
    s_mul_i32 s{S_T2}, s{S_W}, 45056
    s_cmp_eq_u32 s{S_W}, 3
    s_cselect_b32 s{S_T2}, 126976, s{S_T2}
    v_add_u32 v{VB}, s{S_T2}, v{VA}
    ''')
    srd('Wv',WSZ); dma_w(0)
    srd('Wo',4096*1280)
    a(f'''
    s_mul_i32 s{S_T0}, s{S_H}, {128*1280}
    s_mul_i32 s{S_T1}, s{S_X}, 640
    s_add_u32 s{S_T0}, s{S_T0}, s{S_T1}
    s_mul_i32 s{S_T1}, s{S_W}, 192
    s_min_u32 s{S_T1}, s{S_T1}, 512
    s_add_u32 s{S_T0}, s{S_T0}, s{S_T1}
    ''')
    lw=a.newlabel('L_wo2'); le=a.newlabel('L_woe')
    a(f's_cmp_ge_u32 s{S_W}, 2\ns_cbranch_scc1 {lw}')
    for CH,npair in ((12,3),(8,2)):
        pitch=CH*16; nin=128*CH//64
        for i in range(nin):
            if CH==12:
                a(f'''
                v_add_u32 v{V_T3}, {64*i}, v{V_T0}
                v_mul_u32_u24 v{V_T4}, 43691, v{V_T3}
                v_lshrrev_b32 v{V_T4}, 19, v{V_T4}
                v_mul_u32_u24 v{V_T5}, 12, v{V_T4}
                v_sub_u32 v{V_T5}, v{V_T3}, v{V_T5}
                ''')
            else:
                a(f'''
                v_add_u32 v{V_T3}, {64*i}, v{V_T0}
                v_lshrrev_b32 v{V_T4}, 3, v{V_T3}
                v_and_b32 v{V_T5}, 7, v{V_T3}
                ''')
            a(f'''
            v_mul_u32_u24 v{V_T4}, 1280, v{V_T4}
            v_lshl_add_u32 v{V_T4}, v{V_T5}, 4, v{V_T4}
            s_add_u32 m0, s{S_T2}, {20480+1024*i}
            buffer_load_dwordx4 v{V_T4}, s[{S_TMP}:{S_TMP+3}], s{S_T0} offen lds
            ''')
        a(f's_waitcnt vmcnt({nin})')
        tr_w(2,0,VB)
        a(f'''
        v_mul_u32_u24 v{V_T4}, {pitch}, v{VC}
        v_add_u32 v{V_T4}, v{V_T4}, v{VD}
        v_add_u32 v{V_T4}, s{S_T2}, v{V_T4}
        s_waitcnt vmcnt(0)
        ''')
        for p in range(npair):
            for jj in range(4):
                f=BO(p,jj)
                for i in range(4):
                    off=20480+(32*jj+16*(i>>1)+2*(i&1))*pitch+64*p
                    a(f'ds_read_b64_tr_b16 {Rp(f,2*i)}, v{V_T4} offset:{off}')
        if CH==12:
            a(f's_branch {le}\n{lw}:')
    a(f'{le}:')
    a('s_waitcnt lgkmcnt(0)')
    a('s_barrier')

def spin_wait_word(a, srd, voff, cond_ge, tmpv, L_abort):
    l=a.newlabel('L_sw')
    a(f'''
    {l}:
    buffer_load_dword v{tmpv}, v{voff}, s[{srd}:{srd+3}], 0 offen sc1
    s_waitcnt vmcnt(0)
    v_readfirstlane_b32 s{S_T0}, v{tmpv}
    s_cmp_ge_u32 s{S_T0}, {cond_ge}
    s_cbranch_scc1 {l}_ok
    s_sleep 4
    s_sub_u32 s{S_SPIN}, s{S_SPIN}, 1
    s_cbranch_scc0 {l}
    s_branch {L_abort}
    {l}_ok:
    ''')

def kv_offsets(a, seg):
    a(f'''
    s_lshl_b32 s{S_T0}, s{seg}, 5
    s_add_u32 s{S_T0}, s{S_T0}, s{S_H}
    s_lshl_b32 s{S_T0}, s{S_T0}, 13
    s_add_u32 s{S_KO}, s{S_T0}, {WS_KX}
    s_add_u32 s{S_KO+1}, s{S_T0}, {WS_KX+4096}
    s_add_u32 s{S_KO+2}, s{S_T0}, {WS_VX}
    s_add_u32 s{S_KO+3}, s{S_T0}, {WS_VX+4096}
    ''')
DMAFL=['sc1']
def kv_dma_part(buf, part):
    L=[]
    for q in range(2):
        so=S_KO+2*part+q
        L.append([f's_add_u32 m0, s{buf}, {8192*part+4096*q}', f'buffer_load_dwordx4 v{V_L16}, {WSR}, s{so} offen {DMAFL[0]} lds'])
        for i in range(1,4):
            L.append([f'buffer_load_dwordx4 v{V_L16}, {WSR}, s{so} offen offset:{1024*i} {DMAFL[0]} lds'])
    return L
def flag_kv_addr(a, seg, vdst):
    a(f'''
    s_lshr_b32 s{S_T0}, s{seg}, 2
    s_lshl_b32 s{S_T0}, s{S_T0}, 5
    s_add_u32 s{S_T0}, s{S_T0}, s{S_H}
    s_lshl_b32 s{S_T0}, s{S_T0}, 2
    s_add_u32 s{S_T0}, s{S_T0}, {FLAG_KV}
    v_mov_b32 v{vdst}, s{S_T0}
    ''')

def dbg_time(a,cfg,off):
    if not cfg.get('total'): return
    lab=a.newlabel('L_dt')
    a(f'''
    s_memrealtime s[98:99]
    s_waitcnt lgkmcnt(0)
    s_sub_u32 s98, s98, s96
    s_cmp_lg_u32 s{S_W}, 3
    s_cbranch_scc1 {lab}
    s_add_u32 s99, s{S_H}, s{S_X}
    s_cmp_lg_u32 s99, 0
    s_cbranch_scc1 {lab}
    v_mov_b32 v{V_T3}, {off}
    v_mov_b32 v{V_T4}, s98
    s_mov_b64 exec, 1
    buffer_store_dword v{V_T4}, v{V_T3}, s[{S_DBG}:{S_DBG+3}], 0 offen
    s_mov_b64 exec, -1
    {lab}:
    ''')

def chain_start(a, cfg, L_abort):
    dbg_time(a,cfg,236)
    a(f'''
    v_and_b32 v{V_T0}, 63, v0
    v_and_b32 v{V_T1}, 15, v{V_T0}
    v_lshrrev_b32 v{V_T2}, 4, v{V_T0}
    ''')
    for wv in range(3):
        lab=a.newlabel('L_mw')
        a(f's_cmp_lg_u32 s{S_W}, {wv}\ns_cbranch_scc1 {lab}')
        for c0,reg in zip(AG[wv],AG_MW[wv]):
            a(f'''
            v_add_u32 v{V_T3}, {c0}, v{V_T0}
            v_mul_u32_u24 v{reg}, 52429, v{V_T3}
            v_lshrrev_b32 v{reg}, 21, v{reg}            ; t
            v_lshlrev_b32 v{reg}, 1, v{reg}
            v_add_u32 v{reg}, v{reg}, v{V_T3}           ; ci + 2t
            v_lshlrev_b32 v{reg}, 4, v{reg}
            v_add_u32 v{reg}, {L_MI}, v{reg}
            ''')
        a(f'{lab}:')
    a(f'v_mov_b32 v{V_T3}, {DBG_INIT}')
    spin_wait_word(a,S_DBG,V_T3,64,V_T4,L_abort)
    if cfg.get('full'):
        a(f'v_mov_b32 v{V_T3}, {DBG_ZERO}')
        spin_wait_word(a,S_DBG,V_T3,256,V_T4,L_abort)
    if cfg.get('autopar'):
        a(f'v_mov_b32 v{V_T3}, {FLAG_PAR}')
        spin_wait_word(a,S_WS,V_T3,1,V_T4,L_abort)
        a(f's_sub_u32 s{S_PAR}, s{S_T0}, 1\ns_lshl_b32 s{S_PAR}, s{S_PAR}, 13')
    a(f'''
    s_add_u32 s{S_XR0}, s{S_XR0}, s{S_PAR}
    s_add_u32 s{S_XW0}, s{S_XW0}, s{S_PAR}
    s_mov_b32 s{S_XR}, s{S_XR0}
    s_mov_b32 s{S_XW}, s{S_XW0}
    ''')
    dbg_time(a,cfg,240)
    lab=a.newlabel('L_st')
    a(f's_cmp_lg_u32 s{S_W}, 3\ns_cbranch_scc1 {lab}\ns_mov_b32 s{S_SEG}, 0')
    flag_kv_addr(a,S_SEG,V_T3)
    spin_wait_word(a,S_WS,V_T3,cfg.get('kvflag',1),V_T4,L_abort)
    dbg_time(a,cfg,244)
    for sg in range(2):
        a(f's_mov_b32 s{S_SEG}, {sg}\ns_mov_b32 s{S_KVW}, {L_KV+16384*sg}')
        kv_offsets(a,S_SEG)
        for part in range(2):
            for grp in kv_dma_part(S_KVW,part):
                for x in grp: a(x)
        a('s_waitcnt vmcnt(0)')
    a(f'''
    v_mov_b32 v{V_FLAG}, 2
    {lab}:
    s_barrier
    s_mov_b32 s{S_STEP}, 0
    s_mov_b32 s{S_MCUR}, s{S_MBASE}
    s_add_u32 s{S_MNXT}, s{S_MBASE}, 8192
    s_add_u32 s{S_MRST}, s{S_MBASE}, 16384
    s_mov_b32 s{S_KVB}, {L_KV}
    s_mov_b32 s{S_KVW}, {L_KV+16384}
    s_mov_b32 s{S_TAG}, 0
    s_lshl_b32 s{S_T0}, s{S_H}, 1
    s_add_u32 s{S_T0}, s{S_T0}, s{S_X}
    s_lshl_b32 s{S_T0}, s{S_T0}, 6
    s_add_u32 s{S_FLM}, s{S_T0}, {FLAG_M}
    s_lshl_b32 s{S_T0}, s{S_H}, 12
    s_add_u32 s{S_KMOFF}, s{S_T0}, {WS_KM}
    s_lshl_b32 s{S_T0}, s{S_H}, 11
    s_add_u32 s{S_VMOFF}, s{S_T0}, {WS_VM}
    ''')

def chain_loop(a, cfg, wv, L_abort, L_done, xs=None):
    io = (wv==3); NP=WO_NP[wv]
    TM = cfg.get('time') and wv==cfg.get('time_wave',0)
    WS=WSR
    sfx=f'w{wv}' + ('' if xs is None else f'x{xs}')
    Lstep=a.newlabel(f'L_step_{sfx}')
    iog = []
    DM=cfg.get('dma',0)
    XL=cfg.get('xvlate',0)
    if cfg.get('nodma'): DM=2
    if DM in (1,3) and io: iog=kv_dma_part(S_KVW,0)+kv_dma_part(S_KVW,1)
    st={'ii':0}
    def iogap(n=1):
        for _ in range(n):
            if st['ii']<len(iog):
                for x in iog[st['ii']]: a(x)
                st['ii']+=1
    a(f'{Lstep}:'); a.flush()
    ag=AG[wv]; Lag=a.newlabel('L_ag')
    n_ag=len(ag)
    AGS=[144,112,124] if n_ag==3 else [144,148,152]
    def agloads(k):
        for i,c0 in enumerate(ag):
            a(f'buffer_load_dwordx4 v[{AGS[k]+4*i}:{AGS[k]+4*i+3}], v{V_L16}, {WS}, s{S_AG2+i if n_ag==3 else S_AG2} offen sc1')
    def agcheck(k):
        if n_ag==1: a(f'v_cmp_eq_u32 vcc, -1, v{AGS[k]}')
        else:
            a(f'v_max3_u32 v{V_T0}, v{AGS[k]}, v{AGS[k]+4}, v{AGS[k]+8}')
            a(f'v_cmp_eq_u32 vcc, -1, v{V_T0}')
    def agwrite(k):
        for i in range(n_ag):
            a(f'ds_write_b128 v{AG_MW[wv][i]}, v[{AGS[k]+4*i}:{AGS[k]+4*i+3}]')
    NS=cfg.get('ag_sets',3)
    if ag:
        for i,c0 in enumerate(ag): a(f's_add_u32 s{S_AG2+i if n_ag==3 else S_AG2}, s{S_MCUR}, {c0*16}')
        agloads(0)
    for r in range(V_K,V_V+4): a(f'v_mov_b32 v{r}, 0')
    if ag and NS>1: agloads(1)
    a(f'v_and_b32 v{V_T1}, 7, v0\nv_mul_u32_u24 v{V_T1}, {MP_}, v{V_T1}\nv_bfe_u32 v{V_T3}, v0, 4, 2\nv_lshl_add_u32 v{V_T2}, v{V_T3}, 4, v{V_T1}')
    if ag:
        if NS>2:
            delay(a,cfg.get('ag_gap',32)); agloads(2)
        a(f'{Lag}:')
        for k in range(NS):
            Lk=f'{Lag}_s{k}'
            a(f's_waitcnt vmcnt({(NS-1)*n_ag})')
            agcheck(k)
            if k==0:
                a(f's_cbranch_vccnz {Lag}_f0')
                agwrite(0)
                a(f'{Lag}_w:')
                a('s_waitcnt lgkmcnt(0)')
                break
    a('s_barrier')
    stamp(a,0,TM)
    def aread(jj): a(f'ds_read_b128 v[{V_A+4*jj}:{V_A+4*jj+3}], v{V_T2} offset:{L_MI+64*jj}')
    def mf(m,jj):
        acc={0:V_Q,1:V_K,2:V_V}[m]; A=V_A+4*jj
        a(f'v_smfmac_f32_16x16x64_bf16 v[{acc}:{acc+3}], v[{A}:{A+3}], {R(BW(m,jj),8)}, v{V_IDX}')
    for jj in range(3): aread(jj)
    nxt=3
    for jj in range(10):
        a(f's_waitcnt lgkmcnt({nxt-1-jj})')
        mf(1,jj)
        if nxt<10: aread(nxt); nxt+=1
        mf(0,jj)
    mf(2,0)
    a(f'v_cvt_pk_bf16_f32 v{V_XS}, v{V_K}, v{V_K+1}')
    a(f'v_cvt_pk_bf16_f32 v{V_XS+2}, v{V_K+2}, v{V_K+3}')
    a(f'v_cvt_pk_bf16_f32 v{V_XS+1}, v{V_Q}, v{V_Q+1}')
    a(f'v_cvt_pk_bf16_f32 v{V_XS+3}, v{V_Q+2}, v{V_Q+3}')
    if ag: a('s_waitcnt vmcnt(0)')
    a(f'buffer_store_dwordx4 v[{V_XS}:{V_XS+3}], v{V_XO}, {WS}, s{S_XW} offen sc1')
    stamp(a,1,TM)
    fill=[f'v_add_u32 v{V_KXR}, s{S_KVB}, v{V_L16}']
    for X in range(2):
        for ks in range(4):
            r=V_KX+16*X+4*ks
            fill.append(f'ds_read_b128 v[{r}:{r+3}], v{V_KXR} offset:{(X*4+ks)*1024}')
    for jj in range(1,10):
        mf(2,jj); a(fill[jj-1])
    a(f's_lshl_b32 s{S_T0}, s{S_W}, 11')
    a(f'v_add_u32 v{V_VXR}, s{S_T0}, v{V_KXR}')
    for T in range(2):
        a(f'ds_read_b128 v[{V_VX+4*T}:{V_VX+4*T+3}], v{V_VXR} offset:{8192+1024*T}')
    a(f'v_cvt_pk_bf16_f32 v{V_XSV}, v{V_V}, v{V_V+1}')
    a(f'v_cvt_pk_bf16_f32 v{V_XSV+1}, v{V_V+2}, v{V_V+3}')
    a(f'buffer_store_dwordx2 v[{V_XSV}:{V_XSV+1}], v{V_XOV}, {WS}, s{S_XW} offen sc1')
    delay(a,cfg['d_x'])
    a(f'buffer_load_dwordx4 v[{V_XR}:{V_XR+3}], v{V_XO}, {WS}, s{S_XR} offen sc1')
    for r in range(V_DO,V_DO+4*NP): a(f'v_mov_b32 v{r}, 0')
    Lx=a.newlabel('L_x'); Rx=a.newlabel('R_x')
    if wv>=2:
        a(f'''
        s_add_u32 s{S_SEG}, s{S_STEP}, 2
        s_min_u32 s{S_SEG}, s{S_SEG}, 63
        s_add_u32 s{S_KVW}, s{S_KVW}, 16384
        s_cmp_ge_u32 s{S_KVW}, {L_KV+3*16384}
        s_cselect_b32 s{S_KVW}, {L_KV}, s{S_KVW}
        ''')
        if cfg.get('dmahit'): a(f's_mov_b32 s{S_SEG}, 0')
        kv_offsets(a,S_SEG)
    if io:
        a(f's_add_u32 s{S_SEG}, s{S_STEP}, 3\ns_min_u32 s{S_SEG}, s{S_SEG}, 63')
        flag_kv_addr(a,S_SEG,V_T2)
        a(f's_add_u32 s{S_SEG}, s{S_STEP}, 4\ns_min_u32 s{S_SEG}, s{S_SEG}, 63')
        flag_kv_addr(a,S_SEG,V_VXR)
        a(f's_lshl_b32 s{S_T0}, s{S_STEP}, 17\ns_add_u32 s{S_PUBO}, s{S_T0}, s{S_KMOFF}')
        a(f's_sub_u32 s{S_T1}, s{S_STEP}, 1\ns_max_i32 s{S_T1}, s{S_T1}, 0\ns_lshl_b32 s{S_T0}, s{S_T1}, 16\ns_add_u32 s{S_AG1}, s{S_T0}, s{S_VMOFF}')
        a(f'v_add_u32 v{V_T0}, {L_VMST+1024*xs}, v{V_L16}\nds_read_b128 v[{V_P1}:{V_P1+3}], v{V_T0}')
        a(f'v_mov_b32 v{V_T5}, s{S_FLM}\nv_mov_b32 v{V_T4}, s{S_T1}')
    if not XL:
        delay(a,cfg['d_xv_io'] if wv>=2 else cfg['d_xv'])
        a(f'buffer_load_dwordx2 v[{V_XRV}:{V_XRV+1}], v{V_XOV}, {WS}, s{S_XR} offen sc1')
        a('s_waitcnt vmcnt(1)')
    else:
        a('s_waitcnt vmcnt(0)')
    a(f'''
    v_cmp_eq_u32 vcc, -1, v{V_XR}
    s_cbranch_vccnz {Rx}
    {Lx}_first:
    ''')
    if XL: a(f'buffer_load_dwordx2 v[{V_XRV}:{V_XRV+1}], v{V_XOV}, {WS}, s{S_XR} offen sc1')
    a(f'{Lx}:')
    stamp(a,2,TM)
    for idx,(r0) in enumerate((V_K,V_Q,V_K+2,V_Q+2)):
        a(f'v_dot2c_f32_bf16 v{r0}, v{V_XR+idx}, v{V_ONELO}')
        a(f'v_dot2c_f32_bf16 v{r0+1}, v{V_XR+idx}, v{V_ONEHI}')
    for idx,(r0) in enumerate((V_K,V_Q,V_K+2,V_Q+2)):
        a(f'v_cvt_pk_bf16_f32 v{V_XS+idx}, v{r0}, v{r0+1}')
    a(f'ds_write_b128 v{V_IMGW}, v[{V_XS}:{V_XS+3}] offset:{L_IMG}')
    a(f'buffer_store_dwordx4 v[{V_SENT}:{V_SENT+3}], v{V_XO}, {WS}, s{S_XR} offen sc1')
    if wv>=2 and DM==0:
        for grp in kv_dma_part(S_KVW,0 if io else 1):
            for x in grp: a(x)
    a('s_waitcnt lgkmcnt(0)')
    stamp(a,8,TM and cfg.get('detail'))
    a('s_barrier')
    stamp(a,9,TM and cfg.get('detail'))
    for ks in range(4):
        for u in range(2):
            r=V_F+4*ks+2*u
            a(f'ds_read_b64_tr_b16 v[{r}:{r+1}], v{V_IMGR} offset:{L_IMG+1024*ks+512*u}')
    ioh=[]
    if io:
        lok=a.newlabel('L_kvok'); lsp=a.newlabel('L_kvsp')
        ioh=[f'v_readfirstlane_b32 s{S_T1}, v{V_FLAG}', f's_cmp_lt_u32 s{S_T1}, {cfg.get("kvflag",1)}', f's_cbranch_scc1 {lsp}\n{lok}:']
        if not cfg.get('nopub'):
            ioh+=[f'buffer_store_dwordx4 v[{V_P1}:{V_P1+3}], v{V_L16}, {WS}, s{S_AG1} offen offset:{1024*xs} sc1',
                  f's_mov_b64 exec, 1\nbuffer_store_dword v{V_T4}, v{V_T5}, {WS}, 0 offen sc1\ns_mov_b64 exec, -1']
        ioh+=[f'buffer_load_dword v{V_FLAG}, v{V_VXR}, {WS}, 0 offen sc1']
    for ks in range(4):
        F=f'v[{V_F+4*ks}:{V_F+4*ks+3}]'
        a(f's_waitcnt lgkmcnt({6-2*ks})')
        c=lambda d: ('0' if ks==0 else f'v[{d}:{d+3}]')
        for k3,(d,A) in enumerate(((V_S0,f'v[{V_KX+4*ks}:{V_KX+4*ks+3}]'),(V_S1,f'v[{V_KX+16+4*ks}:{V_KX+16+4*ks+3}]'),(V_SM,F))):
            a(f'v_mfma_f32_16x16x32_bf16 v[{d}:{d+3}], {A}, {F}, {c(d)}')
            if io and k3==0 and (ks>>1)==xs and not cfg.get('nopub'):
                a(f'buffer_store_dwordx4 {F}, v{V_L16}, {WS}, s{S_PUBO} offen offset:{1024*ks} sc1')
            elif ioh: a(ioh.pop(0))
            if io and DM==3: iogap(1 if ks<2 else 2)
    while ioh: a(ioh.pop(0))
    stamp(a,3,TM)
    vals=[V_S0,V_S0+1,V_S0+2,V_S0+3,V_S1,V_S1+1,V_S1+2,V_S1+3,V_SM,V_SM+1]
    a(f'v_max3_f32 v{V_MX}, v{vals[0]}, v{vals[1]}, v{vals[2]}')
    a(f'v_max3_f32 v{V_T0}, v{vals[3]}, v{vals[4]}, v{vals[5]}')
    a(f'v_max3_f32 v{V_MX}, v{V_MX}, v{vals[6]}, v{vals[7]}')
    a(f'v_max3_f32 v{V_T0}, v{V_T0}, v{vals[8]}, v{vals[9]}')
    a(f'v_max_f32 v{V_MX}, v{V_MX}, v{V_T0}')
    a(f'v_max_f32 v{V_T1}, v{V_MX}, v{V_MX}')
    a(f'v_permlane16_swap_b32 v{V_MX}, v{V_T1}')
    a(f'v_max_f32 v{V_MX}, v{V_MX}, v{V_T1}')
    a(f'v_mov_b32 v{V_T1}, v{V_MX}')
    a(f'v_permlane32_swap_b32 v{V_MX}, v{V_T1}')
    a(f'v_max_f32 v{V_MX}, v{V_MX}, v{V_T1}')
    a(f'v_mul_f32 v{V_MX}, s{S_C}, v{V_MX}')
    for v in vals[::2]:
        a(f'v_pk_fma_f32 v[{v}:{v+1}], v[{v}:{v+1}], s[{S_C}:{S_C+1}], v[{V_MX}:{V_MX+1}] op_sel_hi:[1,1,0] neg_lo:[0,0,1] neg_hi:[0,0,1]')
    for v in vals[:4]: a(f'v_exp_f32 v{v}, v{v}')
    a(f'v_cvt_pk_bf16_f32 v{V_P1}, v{V_S0}, v{V_S0+1}')
    for v in vals[4:6]: a(f'v_exp_f32 v{v}, v{v}')
    a(f'v_cvt_pk_bf16_f32 v{V_P1+1}, v{V_S0+2}, v{V_S0+3}')
    for v in vals[6:8]: a(f'v_exp_f32 v{v}, v{v}')
    a(f'v_cvt_pk_bf16_f32 v{V_P1+2}, v{V_S1}, v{V_S1+1}')
    a(f'v_exp_f32 v{vals[8]}, v{vals[8]}')
    a(f'v_cvt_pk_bf16_f32 v{V_P1+3}, v{V_S1+2}, v{V_S1+3}')
    a(f'v_exp_f32 v{vals[9]}, v{vals[9]}')
    Lv=a.newlabel('L_xv'); Rv=a.newlabel('R_xv')
    nd=(8 if (wv>=2 and DM==0) else 0)+(st['ii'] if io else 0)
    a(f's_waitcnt vmcnt({1+nd+((1 if cfg.get("nopub") else 5) if io else 0)})')
    a(f'v_cmp_eq_u32 vcc, -1, v{V_XRV}')
    a(f'v_pk_add_f32 v[{V_T0}:{V_T1}], v[{V_S0}:{V_S0+1}], v[{V_S0+2}:{V_S0+3}]')
    a(f'v_mfma_f32_16x16x32_bf16 v[{V_O[0]}:{V_O[0]+3}], v[{V_VX}:{V_VX+3}], v[{V_P1}:{V_P1+3}], 0')
    a(f's_cbranch_vccnz {Rv}\n{Lv}:')
    a(f'v_dot2c_f32_bf16 v{V_V}, v{V_XRV}, v{V_ONELO}')
    a(f'v_dot2c_f32_bf16 v{V_V+1}, v{V_XRV}, v{V_ONEHI}')
    a(f'v_mfma_f32_16x16x32_bf16 v[{V_O[1]}:{V_O[1]+3}], v[{V_VX+4}:{V_VX+7}], v[{V_P1}:{V_P1+3}], 0')
    a(f'v_dot2c_f32_bf16 v{V_V+2}, v{V_XRV+1}, v{V_ONELO}')
    a(f'v_dot2c_f32_bf16 v{V_V+3}, v{V_XRV+1}, v{V_ONEHI}')
    a(f'v_cvt_pk_bf16_f32 v{V_P2}, v{V_SM}, v{V_SM+1}')
    a(f'v_cvt_pk_bf16_f32 v{V_VM[0]}, v{V_V}, v{V_V+1}')
    a(f'v_pk_add_f32 v[{V_T2}:{V_T3}], v[{V_S1}:{V_S1+1}], v[{V_S1+2}:{V_S1+3}]')
    a(f'v_cvt_pk_bf16_f32 v{V_VM[1]}, v{V_V+2}, v{V_V+3}')
    a(f'v_pk_add_f32 v[{V_T0}:{V_T1}], v[{V_T0}:{V_T1}], v[{V_SM}:{V_SM+1}]')
    a(f'buffer_store_dwordx2 v[{V_SENT}:{V_SENT+1}], v{V_XOV}, {WS}, s{S_XR} offen sc1')
    a(f'v_permlane16_swap_b32 v{V_VM[0]}, v{V_VM[1]}')
    a(f'v_pk_add_f32 v[{V_T0}:{V_T1}], v[{V_T0}:{V_T1}], v[{V_T2}:{V_T3}]')
    a(f'v_permlane32_swap_b32 v{V_VM[0]}, v{V_VM[1]}')
    a(f'v_add_f32 v{V_SUM}, v{V_T0}, v{V_T1}')
    a(f'v_add_f32 v{V_T2}, v{V_T0}, v{V_T1}')
    a(f'v_mfma_f32_16x16x16_bf16 v[{V_O[0]}:{V_O[0]+3}], v[{V_VM[0]}:{V_VM[0]+1}], v[{V_P2}:{V_P2+1}], v[{V_O[0]}:{V_O[0]+3}]')
    a(f'v_permlane16_swap_b32 v{V_SUM}, v{V_T2}')
    a(f'v_mfma_f32_16x16x16_bf16 v[{V_O[1]}:{V_O[1]+3}], v[{V_VM[1]}:{V_VM[1]+1}], v[{V_P2}:{V_P2+1}], v[{V_O[1]}:{V_O[1]+3}]')
    a(f'v_add_f32 v{V_SUM}, v{V_SUM}, v{V_T2}')
    a(f'v_mov_b32 v{V_T2}, v{V_SUM}')
    a(f'v_mov_b32 v{V_XSV}, v{V_VM[0]}')
    a(f'v_mov_b32 v{V_XSV+1}, v{V_VM[1]}')
    a(f'v_permlane32_swap_b32 v{V_SUM}, v{V_T2}')
    a(f'v_add_f32 v{V_MX}, v{V_SUM}, v{V_T2}')
    a(f'v_rcp_f32 v{V_MX}, v{V_MX}')
    for T in range(2):
        for hh in range(2):
            r=V_O[T]+2*hh
            a(f'v_pk_mul_f32 v[{r}:{r+1}], v[{r}:{r+1}], v[{V_MX}:{V_MX+1}] op_sel_hi:[1,0]')
        a(f'v_cvt_pk_bf16_f32 v{V_O[T]}, v{V_O[T]}, v{V_O[T]+1}')
        a(f'v_cvt_pk_bf16_f32 v{V_O[T]+1}, v{V_O[T]+2}, v{V_O[T]+3}')
    a(f's_mov_b64 exec, s[{S_MO}:{S_MO+1}]')
    for T in range(2):
        a(f'ds_write_b64 v{V_OW}, v[{V_O[T]}:{V_O[T]+1}] offset:{32*T}')
    a('s_mov_b64 exec, -1')
    a(f'ds_write_b64 v{V_VMST}, v[{V_XSV}:{V_XSV+1}]')
    if wv in (0,2):
        lab=a.newlabel('L_nrst')
        if wv==0: a(f's_cmp_eq_u32 s{S_HASRS}, 0\ns_cbranch_scc1 {lab}')
        a(f'''
        s_mov_b64 exec, s[{S_MP}:{S_MP+1}]
        buffer_store_dword v{V_SENT}, v{V_MPUB}, {WS}, s{S_MRST} offen
        buffer_store_dword v{V_SENT}, v{V_MPUB}, {WS}, s{S_MRST} offen offset:640
        s_mov_b64 exec, -1
        {lab}:
        ''')
    a('s_waitcnt lgkmcnt(0)')
    a('s_barrier')
    stamp(a,4,TM)
    for jj in range(4):
        a(f'ds_read_b128 v[{V_AO+4*jj}:{V_AO+4*jj+3}], v{V_OR} offset:{64*jj}')
    a(f's_cmp_eq_u32 s{S_STEP}, 63')
    a(f's_cbranch_scc1 {L_done}_{sfx}')
    soff=['0',f's{S_P1}',f's{S_P2}']
    def pst(p):
        d=V_DO+4*p
        a(f'v_cvt_pk_bf16_f32 v{d}, v{d}, v{d+1}')
        a(f'v_cvt_pk_bf16_f32 v{d+1}, v{d+2}, v{d+3}')
        a(f'v_and_or_b32 v{d}, v{d}, -2, s{S_TAG}')
        a(f'buffer_store_dwordx2 v[{d}:{d+1}], v{V_PST}, {WS}, {soff[p]} offen')
    for p in range(NP):
        for jj in range(4):
            if p==0: a(f's_waitcnt lgkmcnt({3-jj})')
            A=V_AO+4*jj; d=V_DO+4*p
            a(f'v_smfmac_f32_16x16x64_bf16 v[{d}:{d+3}], v[{A}:{A+3}], {R(BO(p,jj),8)}, v{V_IDX}')
            if p>=1 and jj==1: pst(p-1)
    pst(NP-1)
    stamp(a,5,TM)
    if io:
        while st['ii']<len(iog):
            delay(a,cfg['d_trk']); iogap()
    elif wv==1:
        delay(a,cfg['d_ag_io'])
    else:
        lskip=a.newlabel('L_nors'); Lr=a.newlabel('L_rs'); Rr=a.newlabel('R_rs'); lj=a.newlabel('L_rsj')
        if wv==0: a(f's_cmp_eq_u32 s{S_HASRS}, 0\ns_cbranch_scc1 {lskip}')
        delay(a,cfg['d_rs'])
        RS=[V_RL,112,128]; NR=cfg.get('rs_sets',3)
        SEL=f'v[{V_SEL}:{V_SEL+3}]'; RD=f'v[{V_RD}:{V_RD+3}]'
        def rsloads(k):
            for i in range(4):
                a(f'buffer_load_dwordx4 v[{RS[k]+4*i}:{RS[k]+4*i+3}], v{V_PLD}, {WS}, 0 offen offset:{1024*i} sc1')
        def rsproc(k):
            b=RS[k]; y=4*(NR-1)
            a(f's_waitcnt vmcnt({y+3})')
            a(f'v_mfma_f32_16x16x32_bf16 {RD}, {SEL}, v[{b}:{b+3}], 0')
            a(f's_waitcnt vmcnt({y+2})')
            a(f'v_mfma_f32_16x16x32_bf16 {RD}, {SEL}, v[{b+4}:{b+7}], {RD}')
            a(f'v_bitop3_b32 v{V_T0}, v{b}, v{b+4}, v{V_T3} bitop3:0x7e')
            a(f's_waitcnt vmcnt({y+1})')
            a(f'v_mfma_f32_16x16x32_bf16 {RD}, {SEL}, v[{b+8}:{b+11}], {RD}')
            a(f's_waitcnt vmcnt({y})')
            a(f'v_bitop3_b32 v{V_T1}, v{b+8}, v{b+12}, v{V_T3} bitop3:0x7e')
            a(f'v_mfma_f32_16x16x32_bf16 {RD}, {SEL}, v[{b+12}:{b+15}], {RD}')
            a(f'v_bitop3_b32 v{V_T0}, v{V_T0}, v{V_T1}, 1 bitop3:0xa8')
            a(f'v_cmp_ne_u32 vcc, 0, v{V_T0}')
        a(f'v_mov_b32 v{V_T3}, s{S_TAG}')
        for k in range(NR): rsloads(k)
        rsproc(0)
        a(f's_cbranch_vccnz {Rr}_0')
        a(f'{Lr}:')
        stamp(a,6,TM)
        for r in range(2): a(f'v_add_f32_dpp v{V_RD+r}, v{V_RD+r}, v{V_RD+r} row_ror:8 row_mask:0xf bank_mask:0xf')
        for r in range(2): a(f'v_mov_b32_dpp v{V_RD+2+r}, v{V_RD+r} quad_perm:[1,0,3,2] row_mask:0xf bank_mask:0xf')
        for r in range(2): a(f'v_cvt_pk_bf16_f32 v{V_RD+r}, v{V_RD+r}, v{V_RD+2+r}')
        for r in range(2): a(f'v_min_u32 v{V_RD+r}, -2, v{V_RD+r}')
        a(f's_mov_b64 exec, s[{S_MP}:{S_MP+1}]')
        a(f'buffer_store_dword v{V_RD}, v{V_MPUB}, {WS}, s{S_MNXT} offen')
        a(f'buffer_store_dword v{V_RD+1}, v{V_MPUB}, {WS}, s{S_MNXT} offen offset:640')
        a('s_mov_b64 exec, -1')
        if wv==0:
            a(f's_branch {lj}\n{lskip}:')
            delay(a,cfg['d_ag_io'])
            a(f'{lj}:')
    stamp(a,7,TM)
    a(f'''
    s_add_u32 s{S_STEP}, s{S_STEP}, 1
    s_xor_b32 s{S_TAG}, s{S_TAG}, 1
    s_lshl_b32 s{S_T0}, s{S_TAG}, 11
    s_add_u32 s{S_XW}, s{S_XW0}, s{S_T0}
    s_add_u32 s{S_XR}, s{S_XR0}, s{S_T0}
    s_mov_b32 s{S_T0}, s{S_MCUR}
    s_mov_b32 s{S_MCUR}, s{S_MNXT}
    s_mov_b32 s{S_MNXT}, s{S_MRST}
    s_mov_b32 s{S_MRST}, s{S_T0}
    s_add_u32 s{S_KVB}, s{S_KVB}, 16384
    s_cmp_ge_u32 s{S_KVB}, {L_KV+3*16384}
    s_cselect_b32 s{S_KVB}, {L_KV}, s{S_KVB}
    ''')
    if not io and ag: delay(a, cfg['d_ag'])
    a(f's_branch {Lstep}')
    def budget(k):
        count(a,k,cfg.get('time'))
        a(f's_sub_u32 s{S_SPIN}, s{S_SPIN}, 1')
        a(f's_cbranch_scc1 {L_abort}')
    if ag:
        for k in range(NS):
            a(f'{Lag}_f{k}:'); a.flush(); budget(0)
            agloads(k)
            k2=(k+1)%NS
            a(f's_waitcnt vmcnt({(NS-1)*n_ag})')
            agcheck(k2)
            a(f's_cbranch_vccnz {Lag}_f{k2}')
            agwrite(k2)
            a(f's_branch {Lag}_w')
    a(f'{Rx}:'); a.flush(); budget(1)
    a(f'buffer_load_dwordx4 v[{V_XR}:{V_XR+3}], v{V_XO}, {WS}, s{S_XR} offen sc1')
    a('s_waitcnt vmcnt(0)')
    a(f'v_cmp_eq_u32 vcc, -1, v{V_XR}')
    a(f's_cbranch_vccnz {Rx}')
    a(f'buffer_load_dwordx2 v[{V_XRV}:{V_XRV+1}], v{V_XOV}, {WS}, s{S_XR} offen sc1')
    a(f's_branch {Lx}')
    a(f'{Rv}:'); a.flush(); budget(2)
    a(f'buffer_load_dwordx2 v[{V_XRV}:{V_XRV+1}], v{V_XOV}, {WS}, s{S_XR} offen sc1')
    a('s_waitcnt vmcnt(0)')
    a(f'v_cmp_eq_u32 vcc, -1, v{V_XRV}')
    a(f's_cbranch_vccnz {Rv}')
    a(f's_branch {Lv}')
    if wv in (0,2):
        for k in range(NR):
            a(f'{Rr}_{k}:'); a.flush(); budget(3)
            a('s_nop 3')
            rsloads(k)
            k2=(k+1)%NR
            rsproc(k2)
            a(f's_cbranch_vccnz {Rr}_{k2}')
            a(f's_branch {Lr}')
    if io:
        a(f'{lsp}:'); a.flush()
        a(f'''
        buffer_load_dword v{V_FLAG}, v{V_T2}, {WS}, 0 offen sc1
        s_waitcnt vmcnt(0)
        v_readfirstlane_b32 s{S_T1}, v{V_FLAG}
        s_cmp_ge_u32 s{S_T1}, {cfg.get("kvflag",1)}
        s_cbranch_scc1 {lok}
        s_sleep 2
        s_sub_u32 s{S_SPIN}, s{S_SPIN}, 1
        s_cbranch_scc0 {lsp}
        s_branch {L_abort}
        ''')
    a(f'{L_done}_{sfx}:'); a.flush()
    if io: io_publish(a,cfg,xs)
    a(f's_branch {L_done}')
    return Lag if ag else None

def io_publish(a,cfg,xs):
    WS=WSR
    if cfg.get('nopub'): return
    a(f'''
    s_lshl_b32 s{S_T0}, s{S_STEP}, 16
    s_add_u32 s{S_AG1}, s{S_T0}, s{S_VMOFF}
    v_add_u32 v{V_T0}, {L_VMST+1024*xs}, v{V_L16}
    ds_read_b128 v[{V_F}:{V_F+3}], v{V_T0}
    s_waitcnt lgkmcnt(0)
    buffer_store_dwordx4 v[{V_F}:{V_F+3}], v{V_L16}, {WS}, s{S_AG1} offen offset:{1024*xs} sc1
    ''')

def chain_finish(a,cfg,L_done,L_exit):
    WS=WSR
    a(f'{L_done}:'); a.flush()
    lab=a.newlabel('L_fin')
    a(f'''
    s_waitcnt vmcnt(0)
    s_cmp_lg_u32 s{S_W}, 3
    s_cbranch_scc1 {lab}
    v_mov_b32 v{V_T0}, s{S_FLM}
    v_mov_b32 v{V_T1}, 64
    s_mov_b64 exec, 1
    buffer_store_dword v{V_T1}, v{V_T0}, {WS}, 0 offen sc1
    s_mov_b64 exec, -1
    {lab}:
    ''')
    if cfg.get('total'):
        lab=a.newlabel('L_ntot')
        a(f'''
        s_memtime s[88:89]
        s_memrealtime s[90:91]
        s_waitcnt lgkmcnt(0)
        s_sub_u32 s88, s88, s84
        s_sub_u32 s90, s90, s86
        s_cmp_lg_u32 s{S_W}, 0
        s_cbranch_scc1 {lab}
        s_cmp_lg_u32 s{S_H}, 0
        s_cbranch_scc1 {lab}
        s_lshl_b32 s{S_T0}, s{S_X}, 3
        s_add_u32 s{S_T0}, s{S_T0}, 48
        v_mov_b32 v{V_T0}, s{S_T0}
        v_mov_b32 v{V_T2}, s88
        v_mov_b32 v{V_T3}, s90
        s_mov_b64 exec, 1
        buffer_store_dwordx2 v[{V_T2}:{V_T3}], v{V_T0}, s[{S_DBG}:{S_DBG+3}], 0 offen
        s_sub_u32 s86, s86, s96
        v_mov_b32 v{V_T2}, s86
        v_mov_b32 v{V_T3}, s{S_PAR}
        v_mov_b32 v{V_T0}, 224
        buffer_store_dwordx2 v[{V_T2}:{V_T3}], v{V_T0}, s[{S_DBG}:{S_DBG+3}], 0 offen
        s_mov_b64 exec, -1
        s_waitcnt vmcnt(0)
        {lab}:
        ''')
    if cfg.get('time'):
        w = cfg.get('time_wave',0)
        lab=a.newlabel('L_nt')
        a(f'''
        s_cmp_lg_u32 s{S_W}, {w}
        s_cbranch_scc1 {lab}
        s_lshl_b32 s{S_T0}, s{S_H}, 1
        s_add_u32 s{S_T0}, s{S_T0}, s{S_X}
        s_lshl_b32 s{S_T0}, s{S_T0}, 6
        s_add_u32 s{S_T0}, s{S_T0}, {WS_FLAGS+65536}
        v_mov_b32 v{V_T0}, s{S_T0}
        s_mov_b64 exec, 1
        ''')
        for k in range(10):
            a(f'v_mov_b32 v{V_T1}, s{60+k}')
            a(f'buffer_store_dword v{V_T1}, v{V_T0}, {WS}, 0 offen offset:{4*k}')
        for k in range(4):
            a(f'v_mov_b32 v{V_T1}, s{92+k}')
            a(f'buffer_store_dword v{V_T1}, v{V_T0}, {WS}, 0 offen offset:{40+4*k}')
        a(f's_mov_b64 exec, -1\ns_waitcnt vmcnt(0)\n{lab}:')
    a(f's_branch {L_exit}')

def chain_all(a,cfg,L_exit):
    ABS[0]=cfg.get('abs')
    DMAFL[0]={0:'sc1',1:'',2:'nt',3:'sc1 nt',4:'sc0 sc1'}[cfg.get('dmafl',0)]
    L_abort='L_chain_abort'; L_done='L_chain_done'
    chain_prologue(a,cfg)
    dbg_time(a,cfg,232)
    chain_weights(a,cfg)
    chain_start(a,cfg,L_abort)
    if cfg.get('time'):
        for k in range(10): a(f's_mov_b32 s{60+k}, 0')
        for k in range(4): a(f's_mov_b32 s{92+k}, 0')
        a('s_memtime s[56:57]'); a('s_waitcnt lgkmcnt(0)'); a('s_mov_b32 s58, s56')
    if cfg.get('total'):
        a('s_memtime s[84:85]\ns_memrealtime s[86:87]\ns_waitcnt lgkmcnt(0)')
    a('s_setprio 3')
    for wv in range(3):
        a(f's_cmp_lg_u32 s{S_W}, {wv}')
        a(f's_cbranch_scc1 L_chain_w{wv+1}')
        chain_loop(a,cfg,wv,L_abort,L_done)
        a(f'L_chain_w{wv+1}:'); a.flush()
    a(f's_cmp_lg_u32 s{S_X}, 0')
    a('s_cbranch_scc1 L_chain_w3x1')
    chain_loop(a,cfg,3,L_abort,L_done,0)
    a('L_chain_w3x1:'); a.flush()
    chain_loop(a,cfg,3,L_abort,L_done,1)
    chain_finish(a,cfg,L_done,L_exit)
    a(f'''{L_abort}:
    v_mov_b32 v{V_T0}, {DBG_ERR}
    v_mov_b32 v{V_T1}, 1
    s_mov_b64 exec, 1
    buffer_atomic_add v{V_T1}, v{V_T0}, s[{S_DBG}:{S_DBG+3}], 0 offen
    s_waitcnt vmcnt(0)
    s_branch {L_exit}
    ''')
```

```python
MB = 1 << 20
KA = dict(A_x=0, A_mem0=8, Wq=16, Wk=24, Wv=32, Wo=40, seg=48, B_x=56, Lre=64, Lim=72, B_re=80, B_im=88,
          C_re=96, C_im=104, log_dt=112, Dskip=120, out=128, dbg=136, ws=144)
WS_KX = 0
WS_VX = 16 * MB
WS_QX = 32 * MB
WS_KM = 48 * MB
WS_VM = 56 * MB
WS_O = 64 * MB
WS_H = 80 * MB
WS_E = 88 * MB
WS_P = 96 * MB
WS_M = 97 * MB
WS_FLAGS = 98 * MB
WS_X = 100 * MB
WS_SIZE = 256 * MB
FLAG_KV = WS_FLAGS
FLAG_Q = WS_FLAGS + 2048
FLAG_M = WS_FLAGS + 4096
FLAG_E = WS_FLAGS + 8192
FLAG_H = WS_FLAGS + 9216
FLAG_O = WS_FLAGS + 9728
FLAG_PAR = WS_FLAGS + 10240
FLAG_BYTES = 16384
DBG_XCC = 0
DBG_INIT = 32
DBG_ERR = 36
DBG_ZERO = 40
DBG_ROLE = 44
DBG_QUEUE = 64
```

```python
from asm import *
from layout import *
XCFG={}

S_WS=8
S_R=12
S_C=16
S_DBG=20
S_W=24; S_TASK=25; S_T0=26; S_T1=27; S_T2=28; S_T3=29
S_RO=30; S_CO=31
S_ST=32; S_STW=33
S_K=34; S_NK=35; S_B=36; S_H=37; S_SPIN=38; S_A0=39; S_A1=40; S_A2=41; S_A3=42
S_OUT=44
S_X2=48
S_RINC=52; S_CINC=53; S_M1=54; S_M2=56; S_ZOK=58
WSR=f's[{S_WS}:{S_WS+3}]'
V_L16=1; V_N=2; V_G=3; V_L=4
V_T0=5; V_T1=6; V_T2=7; V_T3=8; V_T4=9; V_T5=10; V_T6=11
V_RD=12
V_CD=16
V_RA=20
V_CA=22
V_RAc=26
V_CAc=28
V_ACC=64
V_FR=128
STG=32768

def srd(a, s, kname, size, add=0):
    a(f'''
    s_load_dwordx2 s[4:5], s[0:1], {KA[kname]}
    s_waitcnt lgkmcnt(0)
    s_mov_b32 s{s}, s4
    s_mov_b32 s{s+1}, s5
    s_mov_b32 s{s+2}, {size}
    s_mov_b32 s{s+3}, 0x20000
    ''')

def spin_ge(a, voff, val, L_abort, srd_=None, tmp=V_T6, sleep=8):
    l=a.newlabel('L_wsp'); sr_=srd_ or WSR
    a(f'''
    {l}:
    buffer_load_dword v{tmp}, v{voff}, {sr_}, 0 offen sc1
    s_waitcnt vmcnt(0)
    v_readfirstlane_b32 s{S_T3}, v{tmp}
    s_cmp_ge_u32 s{S_T3}, {val}
    s_cbranch_scc1 {l}_ok
    s_sleep {sleep}
    s_sub_u32 s{S_SPIN}, s{S_SPIN}, 1
    s_cbranch_scc0 {l}
    s_branch {L_abort}
    {l}_ok:
    ''')

L_ABORT=['L_w_abort']
def ensure_zero(a):
    lab=a.newlabel('L_zok')
    a(f's_cmp_eq_u32 s{S_ZOK}, 1\ns_cbranch_scc1 {lab}\nv_mov_b32 v{V_T5}, {DBG_ZERO}')
    spin_ge(a,V_T5,256,L_ABORT[0],srd_=f's[{S_DBG}:{S_DBG+3}]',sleep=2)
    a(f's_mov_b32 s{S_ZOK}, 1\n{lab}:')

def signal_add(a, soff_expr_sreg, val=1, nowait=False):
    if not nowait: ensure_zero(a)
    lab=a.newlabel('L_sig')
    if not nowait: a('s_waitcnt vmcnt(0)\ns_barrier')
    a(f'''
    s_cmp_lg_u32 s{S_W}, 0
    s_cbranch_scc1 {lab}
    v_mov_b32 v{V_T0}, s{soff_expr_sreg}
    v_mov_b32 v{V_T1}, {val}
    s_mov_b64 exec, 1
    buffer_atomic_add v{V_T1}, v{V_T0}, {WSR}, 0 offen sc1
    s_mov_b64 exec, -1
    {lab}:
    ''')

def worker_consts(a):
    a(f'''
    v_and_b32 v{V_L}, 63, v0
    v_lshlrev_b32 v{V_L16}, 4, v{V_L}
    v_and_b32 v{V_N}, 15, v{V_L}
    v_lshrrev_b32 v{V_G}, 4, v{V_L}
    v_lshrrev_b32 v{V_T0}, 6, v0
    s_nop 0
    v_readfirstlane_b32 s{S_W}, v{V_T0}
    ''')

def dma_addr_N(a, vdst, pitch, g1key=False):
    a(f'''
    v_lshrrev_b32 v{V_T0}, 3, v{V_L}            ; r8
    v_and_b32 v{V_T1}, 7, v{V_L}                ; s'
    ''')
    if g1key:
        a(f'''
        v_and_b32 v{V_T2}, 3, v{V_T0}
        s_and_b32 s{S_T0}, s{S_W}, 1
        s_lshl_b32 s{S_T0}, s{S_T0}, 2
        v_or_b32 v{V_T2}, s{S_T0}, v{V_T2}
        v_xor_b32 v{V_T1}, v{V_T1}, v{V_T2}
        ''')
    elif not XCFG.get('noswz'):
        a(f'v_xor_b32 v{V_T1}, v{V_T1}, v{V_T0}')
    a(f'''
    s_lshl_b32 s{S_T0}, s{S_W}, 5
    v_add_u32 v{V_T0}, s{S_T0}, v{V_T0}         ; row (i=0)
    s_mov_b32 s{S_T0}, {pitch}
    v_mul_lo_u32 v{V_T0}, v{V_T0}, s{S_T0}
    v_lshl_add_u32 v{vdst}, v{V_T1}, 4, v{V_T0}
    ''')
    for i in range(1,4): a(f'v_add_u32 v{vdst+i}, {8*i*pitch}, v{vdst}')

def dma_addr_T(a, vdst, pitch):
    a(f'''
    v_lshrrev_b32 v{V_T0}, 4, v{V_L}            ; r4
    v_and_b32 v{V_T1}, 15, v{V_L}               ; c'
    v_lshlrev_b32 v{V_T2}, 1, v{V_T0}           ; 2*r4
    {'s_nop 0' if XCFG.get('noswz') else f'v_xor_b32 v{V_T1}, v{V_T1}, v{V_T2}'}
    s_lshl_b32 s{S_T0}, s{S_W}, 4
    v_add_u32 v{V_T0}, s{S_T0}, v{V_T0}         ; k row (i=0)
    s_mov_b32 s{S_T0}, {pitch}
    v_mul_lo_u32 v{V_T0}, v{V_T0}, s{S_T0}
    v_lshl_add_u32 v{vdst}, v{V_T1}, 4, v{V_T0}
    v_xor_b32 v{V_T1}, 8, v{V_T1}
    v_lshl_add_u32 v{vdst+2}, v{V_T1}, 4, v{V_T0}
    v_add_u32 v{vdst+1}, {4*pitch}, v{vdst}
    v_add_u32 v{vdst+3}, {12*pitch}, v{vdst+2}
    v_add_u32 v{vdst+2}, {8*pitch}, v{vdst+2}
    ''')

def read_addr_N(a, vdst, rowbase_expr, ldsoff, g1=False):
    if not g1:
        a(f'''
        v_add_u32 v{V_T0}, s{rowbase_expr}, v{V_N}
        v_lshlrev_b32 v{V_T0}, 7, v{V_T0}
        v_and_b32 v{V_T1}, 7, v{V_N}
        v_xor_b32 v{V_T1}, v{V_T1}, v{V_G}
        ''')
    else:
        a(f'''
        v_lshrrev_b32 v{V_T0}, 2, v{V_N}
        v_lshlrev_b32 v{V_T0}, 5, v{V_T0}
        v_and_b32 v{V_T1}, 3, v{V_N}
        v_add_u32 v{V_T0}, v{V_T0}, v{V_T1}
        v_lshlrev_b32 v{V_T0}, 7, v{V_T0}
        v_bfe_u32 v{V_T2}, v{V_N}, 2, 1
        v_lshl_or_b32 v{V_T1}, v{V_T2}, 2, v{V_T1}
        v_xor_b32 v{V_T1}, v{V_T1}, v{V_G}
        ''')
    a(f'''
    v_lshl_add_u32 v{vdst}, v{V_T1}, 4, v{V_T0}
    v_add_u32 v{vdst}, {ldsoff}, v{vdst}
    v_xor_b32 v{vdst+1}, 64, v{vdst}
    ''')

def read_addr_T(a, vdst, ct0_sreg, ldsoff):
    a(f'''
    v_lshrrev_b32 v{V_T0}, 2, v{V_N}            ; r
    v_and_b32 v{V_T1}, 3, v{V_N}                ; c
    v_lshl_add_u32 v{V_T2}, v{V_G}, 3, v{V_T0}  ; 8g + r
    v_lshlrev_b32 v{V_T2}, 8, v{V_T2}           ; *256
    v_and_b32 v{V_T3}, 1, v{V_G}
    v_lshl_or_b32 v{V_T3}, v{V_T3}, 2, v{V_T0}  ; r | (g&1)<<2
    v_lshl_add_u32 v{V_T2}, v{V_T3}, 5, v{V_T2}
    v_lshrrev_b32 v{V_T3}, 1, v{V_T1}
    v_lshl_add_u32 v{V_T2}, v{V_T3}, 4, v{V_T2}
    v_and_b32 v{V_T3}, 1, v{V_T1}
    v_lshl_add_u32 v{V_T2}, v{V_T3}, 3, v{V_T2}
    s_lshl_b32 s{S_T0}, s{ct0_sreg}, 5
    ''')
    for i in range(4):
        a(f's_add_u32 s{S_T1}, s{S_T0}, {i<<5}')
        a(f'v_xor_b32 v{vdst+i}, s{S_T1}, v{V_T2}')
        a(f'v_add_u32 v{vdst+i}, {ldsoff}, v{vdst+i}')

def gemm_loop(a, name, nstage, MT, NT, rtype, ctype, orient, switch_at=None, switch_code=None, prologue=True, nxt=None):
    def dma_one(srd_, vbase, soff, ldsoff, per, i):
        fl='sc1 ' if (srd_==S_C and ctype=='F') else ''
        a(f's_add_u32 m0, s{S_STW}, {ldsoff+per*i}')
        a(f'buffer_load_dwordx4 v{vbase+i}, s[{srd_}:{srd_+3}], s{soff} offen {fl}lds')
    def dma_stage(inloop=False):
        if inloop and XCFG.get('nodmaloop'): return
        for i in range(4): dma_one(S_R,V_RD,S_RO,0,1024,i)
        for i in range(4): dma_one(S_C,V_CD,S_CO,16384,1024,i)
        a(f's_add_u32 s{S_RO}, s{S_RO}, s{S_RINC}')
        a(f's_add_u32 s{S_CO}, s{S_CO}, s{S_CINC}')
    def rread(k,buf,i):
        if XCFG.get('noread'): return
        d=V_FR+buf+4*i
        if rtype=='N':  a(f'ds_read_b128 v[{d}:{d+3}], v{V_RAc+k} offset:{2048*i}')
        elif rtype=='G1': a(f'ds_read_b128 v[{d}:{d+3}], v{V_RAc+k} offset:{512*i}')
        elif rtype=='F': a(f'ds_read_b128 v[{d}:{d+3}], v{V_RAc} offset:{(i*2+k)*1024}')
    def cread(k,buf,i):
        if XCFG.get('noread'): return
        d=V_FR+buf+4*MT+4*i
        if ctype=='T':
            a(f'ds_read_b64_tr_b16 v[{d}:{d+1}], v{V_CAc+i} offset:{32*k*256}')
            a(f'ds_read_b64_tr_b16 v[{d+2}:{d+3}], v{V_CAc+i} offset:{(32*k+4)*256}')
        elif ctype=='N': a(f'ds_read_b128 v[{d}:{d+3}], v{V_CAc+k} offset:{2048*i}')
        elif ctype=='G1B': a(f'ds_read_b128 v[{d}:{d+3}], v{V_CAc+k} offset:{64*128*i}')
        elif ctype=='F': a(f'ds_read_b128 v[{d}:{d+3}], v{V_CAc} offset:{(i*2+k)*1024}')
    nfr=4*(MT+NT)
    nds=MT+NT*(2 if ctype=='T' else 1)
    def reads(k,buf):
        L=[]
        for i in range(max(MT,NT)):
            if i<NT: L.append(('c',i))
            if i<MT: L.append(('r',i))
        return [ (lambda t=t,i=i: (rread if t=='r' else cread)(k,buf,i)) for t,i in L]
    def mfmas(buf, first):
        L=[]
        for ra in range(MT):
            for cb in range(NT):
                acc=V_ACC+(ra*NT+cb)*4; R_=V_FR+buf+4*ra; C_=V_FR+buf+4*MT+4*cb
                A,B=(R_,C_) if orient=='RC' else (C_,R_)
                L.append(f'v_mfma_f32_16x16x32_bf16 v[{acc}:{acc+3}], v[{A}:{A+3}], v[{B}:{B+3}], v[{acc}:{acc+3}]')
        return L
    nca={'T':4,'N':2,'G1B':2,'F':1}[ctype]; nra={'N':2,'G1':2,'F':1}[rtype]
    if prologue:
        a(f's_lshl_b32 s{S_STW}, s{S_W}, 12')
        dma_stage()
        a(f's_add_u32 s{S_STW}, s{S_STW}, {STG}')
        dma_stage()
        a(f's_add_u32 s{S_STW}, s{S_STW}, {STG}')
        a(f's_mov_b32 s{S_ST}, 0')
    for r in range(V_ACC,V_ACC+4*MT*NT): a(f'v_mov_b32 v{r}, 0')
    a(f's_mov_b32 s{S_K}, 0')
    L=a.newlabel(f'L_gemm_{name}')
    a(f'{L}:'); a.flush()
    if nxt is None:
        lw=a.newlabel('L_gw')
        a(f'''
        s_cmp_ge_u32 s{S_K}, {nstage-1}
        s_cbranch_scc1 {lw}_last
        s_waitcnt vmcnt(8)
        s_branch {lw}
        {lw}_last:
        s_waitcnt vmcnt(0)
        {lw}:
        s_barrier
        ''')
    else:
        a('s_waitcnt vmcnt(8)\ns_barrier')
    for i in range(nra): a(f'v_add_u32 v{V_RAc+i}, s{S_ST}, v{V_RA+i}')
    for i in range(nca): a(f'v_add_u32 v{V_CAc+i}, s{S_ST}, v{V_CA+i}')
    for f in reads(0,0): f()
    ld=a.newlabel('L_gd')
    if nxt is None:
        a(f's_cmp_ge_u32 s{S_K}, {nstage-2}\ns_cbranch_scc1 {ld}')
    else:
        ls=a.newlabel('L_gn')
        a(f's_cmp_lg_u32 s{S_K}, {nstage-2}\ns_cbranch_scc1 {ls}')
        nxt(a)
        a(f'{ls}:')
    if switch_at is not None:
        ls=a.newlabel('L_gs')
        a(f's_cmp_lg_u32 s{S_K}, {switch_at-2}\ns_cbranch_scc1 {ls}')
        switch_code(a)
        a(f'{ls}:')
    dma_stage(True)
    a(f'''
    s_add_u32 s{S_STW}, s{S_STW}, {STG}
    s_sub_u32 s{S_T0}, s{S_STW}, {3*STG}
    s_cmp_ge_u32 s{S_STW}, {3*STG}
    s_cselect_b32 s{S_STW}, s{S_T0}, s{S_STW}
    {ld}:
    s_waitcnt lgkmcnt(0)
    ''')
    rd1=reads(1,nfr); m0=mfmas(0,False)
    for j,m in enumerate(m0):
        if not XCFG.get('nomfma'): a(m)
        if j<len(rd1): rd1[j]()
    for j in range(len(m0),len(rd1)): rd1[j]()
    a('s_waitcnt lgkmcnt(0)')
    for m in mfmas(nfr,False):
        if not XCFG.get('nomfma'): a(m)
    a(f'''
    s_add_u32 s{S_ST}, s{S_ST}, {STG}
    s_cmp_ge_u32 s{S_ST}, {3*STG}
    s_cselect_b32 s{S_ST}, 0, s{S_ST}
    s_add_u32 s{S_K}, s{S_K}, 1
    s_cmp_lt_u32 s{S_K}, {nstage}
    s_cbranch_scc1 {L}
    s_nop 7
    ''')
    if nxt is None: a('s_barrier')

WNAME={'K':'Wk','Q':'Wq','V':'Wv'}
def kqv_setup(a, kind):
    srd(a,S_R,'A_x',2048*1280)
    srd(a,S_C,WNAME[kind],640*8192)
    dma_addr_N(a,V_RD,1280)
    dma_addr_T(a,V_CD,8192)
    a(f'''
    s_mul_i32 s{S_RO}, s{S_B}, {128*1280}
    s_lshl_b32 s{S_CO}, s{S_H}, 8
    s_mov_b32 s{S_RINC}, 128
    s_mov_b32 s{S_CINC}, {64*8192}
    s_lshr_b32 s{S_A0}, s{S_W}, 1            ; wr
    s_and_b32 s{S_A1}, s{S_W}, 1             ; wc
    ''')
def kqv_retarget(kind):
    def f(a):
        a(f'''
        s_load_dwordx2 s[4:5], s[0:1], {KA[WNAME[kind]]}
        s_waitcnt lgkmcnt(0)
        s_mov_b32 s{S_C}, s4
        s_mov_b32 s{S_C+1}, s5
        s_mul_i32 s{S_RO}, s{S_B}, {128*1280}
        s_lshl_b32 s{S_CO}, s{S_H}, 8
        ''')
    return f
def kqv_gemm(a, kind, prologue, nxt):
    if kind=='V':
        a(f's_lshl_b32 s{S_A2}, s{S_A0}, 6\ns_lshl_b32 s{S_A3}, s{S_A1}, 2')
        read_addr_N(a,V_RA,S_A2,0); read_addr_T(a,V_CA,S_A3,16384)
        gemm_loop(a,'V',10,4,4,'N','T','RC',prologue=prologue,nxt=nxt)
        a(f'''
        s_lshl_b32 s{S_T0}, s{S_B}, 2
        s_lshl_b32 s{S_T1}, s{S_A0}, 1
        s_add_u32 s{S_T0}, s{S_T0}, s{S_T1}
        s_lshl_b32 s{S_T0}, s{S_T0}, 5
        s_add_u32 s{S_T0}, s{S_T0}, s{S_H}
        s_lshl_b32 s{S_T0}, s{S_T0}, 13
        s_lshl_b32 s{S_T1}, s{S_A1}, 12
        s_add_u32 s{S_T0}, s{S_T0}, s{S_T1}
        s_add_u32 s{S_T0}, s{S_T0}, {WS_VX}
        s_add_u32 s{S_T1}, s{S_T0}, {32*8192}
        ''')
        for sg in range(2):
            for ft in range(4):
                a0=V_ACC+((2*sg)*4+ft)*4; a1=V_ACC+((2*sg+1)*4+ft)*4; d=32+4*((sg*4+ft)%8)
                a(f'v_cvt_pk_bf16_f32 v{d}, v{a0}, v{a0+1}\nv_cvt_pk_bf16_f32 v{d+1}, v{a0+2}, v{a0+3}')
                a(f'v_cvt_pk_bf16_f32 v{d+2}, v{a1}, v{a1+1}\nv_cvt_pk_bf16_f32 v{d+3}, v{a1+2}, v{a1+3}')
                a(f'buffer_store_dwordx4 v[{d}:{d+3}], v{V_L16}, {WSR}, s{S_T0+sg} offen offset:{1024*ft} sc1')
    else:
        a(f's_lshl_b32 s{S_A2}, s{S_A1}, 6\ns_lshl_b32 s{S_A3}, s{S_A0}, 2')
        read_addr_N(a,V_RA,S_A2,0); read_addr_T(a,V_CA,S_A3,16384)
        gemm_loop(a,kind,10,4,4,'N','T','CR',prologue=prologue,nxt=nxt)
        base=WS_KX if kind=='K' else WS_QX
        a(f'''
        s_lshl_b32 s{S_T0}, s{S_B}, 2
        s_lshl_b32 s{S_T1}, s{S_A1}, 1
        s_add_u32 s{S_T0}, s{S_T0}, s{S_T1}
        s_lshl_b32 s{S_T0}, s{S_T0}, 5
        s_add_u32 s{S_T0}, s{S_T0}, s{S_H}
        s_lshl_b32 s{S_T0}, s{S_T0}, 13
        s_lshl_b32 s{S_T1}, s{S_A0}, 11
        s_add_u32 s{S_T0}, s{S_T0}, s{S_T1}
        s_add_u32 s{S_T0}, s{S_T0}, {base}
        s_add_u32 s{S_T1}, s{S_T0}, 4096
        s_add_u32 s{S_T2}, s{S_T0}, {32*8192}
        s_add_u32 s{S_A2}, s{S_T2}, 4096
        ''')
        so=[S_T0,S_T1,S_T2,S_A2]
        for tt in range(4):
            for k2 in range(2):
                a0=V_ACC+(tt*4+2*k2)*4; a1=a0+4; d=32+4*((tt*2+k2)%8)
                a(f'v_cvt_pk_bf16_f32 v{d}, v{a0}, v{a0+1}\nv_cvt_pk_bf16_f32 v{d+1}, v{a0+2}, v{a0+3}')
                a(f'v_cvt_pk_bf16_f32 v{d+2}, v{a1}, v{a1+1}\nv_cvt_pk_bf16_f32 v{d+3}, v{a1+2}, v{a1+3}')
                a(f'buffer_store_dwordx4 v[{d}:{d+3}], v{V_L16}, {WSR}, s{so[tt]} offen offset:{1024*k2} sc1')
def flag_addr(a, base, dst):
    a(f'''
    s_lshl_b32 s{S_T0}, s{S_B}, 5
    s_add_u32 s{S_T0}, s{S_T0}, s{S_H}
    s_lshl_b32 s{S_T0}, s{S_T0}, 2
    s_add_u32 s{dst}, s{S_T0}, {base}
    ''')
def task_kqv(a, kind, L_next, L_abort):
    kqv_setup(a,kind)
    kqv_gemm(a,kind,True,None)
    flag_addr(a,FLAG_Q if kind=='Q' else FLAG_KV,S_A0)
    signal_add(a,S_A0)
    a(f's_branch {L_next}')
def wstamp(a,k):
    if XCFG.get('wtime'):
        a(f's_memtime s[{64+2*k}:{65+2*k}]')
def wstamp_store(a,n,off):
    if XCFG.get('wtime'):
        lab=a.newlabel('L_wst')
        a(f's_waitcnt lgkmcnt(0)\ns_cmp_lg_u32 s{S_W}, 0\ns_cbranch_scc1 {lab}\ns_mov_b64 exec, 1')
        for k in range(1,n):
            a(f's_sub_u32 s{S_T0}, s{64+2*k}, s{64+2*(k-1)}\nv_mov_b32 v{V_T1}, s{S_T0}\nv_mov_b32 v{V_T0}, {off+4*(k-1)}')
            a(f'buffer_store_dword v{V_T1}, v{V_T0}, s[{S_DBG}:{S_DBG+3}], 0 offen')
        a(f's_mov_b64 exec, -1\n{lab}:')
def task_kvq(a, L_next, L_abort):
    wstamp(a,0)
    kqv_setup(a,'K')
    wstamp(a,1)
    kqv_gemm(a,'K',True,kqv_retarget('V'))
    wstamp(a,2)
    kqv_gemm(a,'V',False,kqv_retarget('Q'))
    wstamp(a,3)
    kqv_gemm(a,'Q',False,None)
    wstamp(a,4)
    flag_addr(a,FLAG_KV,S_A0)
    signal_add(a,S_A0,2)
    flag_addr(a,FLAG_Q,S_A0)
    signal_add(a,S_A0,1,nowait=True)
    wstamp(a,5)
    wstamp_store(a,6,128)
    a(f's_branch {L_next}')

def load_bf16_vec(a, kname, vdst, voff_idx, nelem=640):
    srd(a,S_X2,kname,nelem*2)
    a(f'''
    v_lshlrev_b32 v{V_T0}, 1, v{voff_idx}
    buffer_load_ushort v{vdst}, v{V_T0}, s[{S_X2}:{S_X2+3}], 0 offen
    s_waitcnt vmcnt(0)
    v_lshlrev_b32 v{vdst}, 16, v{vdst}
    ''')

def cmul(a, dr, di, ar, ai, br, bi, t):
    a(f'v_mul_f32 v{t}, v{ar}, v{br}')
    a(f'v_mul_f32 v{t+1}, v{ar}, v{bi}')
    a(f'v_fma_f32 v{t}, -v{ai}, v{bi}, v{t}')
    a(f'v_fma_f32 v{di}, v{ai}, v{br}, v{t+1}')
    a(f'v_mov_b32 v{dr}, v{t}')

def task_g1(a, L_next, L_abort):
    LR,LI,CR,CI,L32R,L32I,L128R,L128I=32,33,34,35,36,37,38,39
    ER,EI=40,41; SR,SI=42,43; TP=44
    EG=48
    PIDX=56; HR,HI=58,59
    srd(a,S_R,'B_x',2048*1280)
    a(f'''
    s_load_dwordx2 s[4:5], s[0:1], {KA['B_re']}
    s_load_dwordx2 s[6:7], s[0:1], {KA['B_im']}
    s_waitcnt lgkmcnt(0)
    s_cmp_ge_u32 s{S_W}, 2
    s_cselect_b32 s{S_C}, s6, s4
    s_cselect_b32 s{S_C+1}, s7, s5
    s_mov_b32 s{S_C+2}, {640*1280}
    s_mov_b32 s{S_C+3}, 0x20000
    ''')
    dma_addr_N(a,V_RD,1280,g1key=True)
    a(f'''
    v_lshrrev_b32 v{V_T0}, 3, v{V_L}
    v_and_b32 v{V_T1}, 7, v{V_L}
    v_xor_b32 v{V_T1}, v{V_T1}, v{V_T0}
    s_and_b32 s{S_T0}, s{S_W}, 1
    s_lshl_b32 s{S_T0}, s{S_T0}, 5
    v_add_u32 v{V_T0}, s{S_T0}, v{V_T0}
    v_mul_u32_u24 v{V_T0}, 1280, v{V_T0}
    v_lshl_add_u32 v{V_CD}, v{V_T1}, 4, v{V_T0}
    ''')
    for i in range(1,4): a(f'v_add_u32 v{V_CD+i}, {8*i*1280}, v{V_CD}')
    a(f'''
    s_mul_i32 s{S_RO}, s{S_B}, {128*1280}
    s_mul_i32 s{S_CO}, s{S_H}, {64*1280}
    s_mov_b32 s{S_RINC}, 128
    s_mov_b32 s{S_CINC}, 128
    s_lshl_b32 s{S_A2}, s{S_W}, 4
    ''')
    read_addr_N(a,V_RA,None,0,g1=True)
    read_addr_N(a,V_CA,S_A2,16384)
    a(f'''
    s_lshl_b32 s{S_T0}, s{S_H}, 6
    s_add_u32 s{S_T0}, s{S_T0}, s{S_A2}
    v_add_u32 v{PIDX}, s{S_T0}, v{V_N}
    ''')
    load_bf16_vec(a,'Lre',LR,PIDX); load_bf16_vec(a,'Lim',LI,PIDX); load_bf16_vec(a,'log_dt',TP,PIDX)
    a(f'''
    v_mul_f32 v{TP}, 0x3fb8aa3b, v{TP}            ; *log2(e)
    v_exp_f32 v{TP}, v{TP}
    s_nop 0
    v_cvt_pk_bf16_f32 v{TP}, v{TP}, v{TP}
    v_lshlrev_b32 v{TP}, 16, v{TP}
    v_mul_f32 v{TP+1}, v{TP}, v{LR}               ; zr
    v_mul_f32 v{TP+2}, v{TP}, v{LI}               ; zi
    v_mul_f32 v{TP+1}, 0x3fb8aa3b, v{TP+1}
    v_exp_f32 v{TP+1}, v{TP+1}                    ; e^zr
    v_mul_f32 v{TP+2}, 0.15915494, v{TP+2}        ; revolutions
    v_fract_f32 v{TP+3}, v{TP+2}
    v_cos_f32 v{CR}, v{TP+3}
    v_sin_f32 v{CI}, v{TP+3}
    s_nop 0
    v_mul_f32 v{CR}, v{CR}, v{TP+1}
    v_mul_f32 v{CI}, v{CI}, v{TP+1}
    v_add_f32 v{TP}, -1.0, v{CR}                  ; a
    v_mul_f32 v{TP+1}, v{LR}, v{LR}
    v_fma_f32 v{TP+1}, v{LI}, v{LI}, v{TP+1}
    v_rcp_f32 v{TP+1}, v{TP+1}
    v_mul_f32 v{TP+2}, v{TP}, v{LR}
    v_fma_f32 v{TP+2}, v{CI}, v{LI}, v{TP+2}      ; a*c + b*d
    v_mul_f32 v{TP+3}, v{CI}, v{LR}
    v_fma_f32 v{TP+3}, -v{TP}, v{LI}, v{TP+3}     ; b*c - a*d
    v_mov_b32 v{LR}, v{CR}
    v_mov_b32 v{LI}, v{CI}
    v_add_f32 v{TP+1}, v{TP+1}, v{TP+1}           ; 2/|Lam|^2
    v_mul_f32 v{CR}, v{TP+2}, v{TP+1}
    v_mul_f32 v{CI}, v{TP+3}, v{TP+1}
    v_mov_b32 v{L32R}, v{LR}
    v_mov_b32 v{L32I}, v{LI}
    ''')
    for _ in range(5): cmul(a,L32R,L32I,L32R,L32I,L32R,L32I,TP)
    a(f'v_mov_b32 v{L128R}, v{L32R}\nv_mov_b32 v{L128I}, v{L32I}')
    for _ in range(2): cmul(a,L128R,L128I,L128R,L128I,L128R,L128I,TP)
    gemm_loop(a,'G1',10,8,2,'G1','G1B','RC')
    def X(aa,part,r): return V_ACC+(aa*2+part)*4+r
    def scan(write):
        for aa in range(8):
            for r in range(4):
                xr,xi=X(aa,0,r),X(aa,1,r)
                a(f'v_fma_f32 v{TP}, v{LR}, v{HR}, v{xr}')
                a(f'v_fma_f32 v{TP+1}, v{LR}, v{HI}, v{xi}')
                a(f'v_fma_f32 v{TP}, -v{LI}, v{HI}, v{TP}')
                a(f'v_fma_f32 v{HI}, v{LI}, v{HR}, v{TP+1}')
                a(f'v_mov_b32 v{HR}, v{TP}')
                if write:
                    a(f'v_mul_f32 v{xr}, v{CR}, v{HR}')
                    a(f'v_mul_f32 v{xi}, v{CR}, v{HI}')
                    a(f'v_fma_f32 v{xr}, -v{CI}, v{HI}, v{xr}')
                    a(f'v_fma_f32 v{xi}, v{CI}, v{HR}, v{xi}')
                    a(f'v_sub_f32 v{xi}, 0, v{xi}')
    a(f'v_mov_b32 v{HR}, 0\nv_mov_b32 v{HI}, 0')
    scan(False)
    for g in range(4):
        a(f'v_lshlrev_b32 v{V_T0}, 2, v{V_N}\nv_add_u32 v{V_T0}, {64*g}, v{V_T0}')
        a(f'ds_bpermute_b32 v{EG+2*g}, v{V_T0}, v{HR}')
        a(f'ds_bpermute_b32 v{EG+2*g+1}, v{V_T0}, v{HI}')
    a('s_waitcnt lgkmcnt(0)')
    a(f'v_mov_b32 v{ER}, v{EG}\nv_mov_b32 v{EI}, v{EG+1}')
    for g in range(1,4):
        cmul(a,ER,EI,ER,EI,L32R,L32I,TP)
        a(f'v_add_f32 v{ER}, v{ER}, v{EG+2*g}\nv_add_f32 v{EI}, v{EI}, v{EG+2*g+1}')
    a(f'''
    s_mul_i32 s{S_T0}, s{S_B}, {640*8}
    s_add_u32 s{S_T0}, s{S_T0}, {WS_E}
    v_lshlrev_b32 v{V_T0}, 3, v{PIDX}
    s_mov_b64 exec, 0xffff
    buffer_store_dwordx2 v[{ER}:{EI}], v{V_T0}, {WSR}, s{S_T0} offen sc1
    s_mov_b64 exec, -1
    s_mul_i32 s{S_T0}, s{S_B}, 10
    s_add_u32 s{S_T0}, s{S_T0}, s{S_H}
    s_lshl_b32 s{S_T0}, s{S_T0}, 2
    s_add_u32 s{S_A0}, s{S_T0}, {FLAG_E}
    ''')
    signal_add(a,S_A0)
    a(f'v_mov_b32 v{SR}, 0\nv_mov_b32 v{SI}, 0\ns_mov_b32 s{S_A1}, 0')
    Ll=a.newlabel('L_lb'); Le=a.newlabel('L_lbe')
    a(f'''
    {Ll}:
    s_cmp_ge_u32 s{S_A1}, s{S_B}
    s_cbranch_scc1 {Le}
    s_mul_i32 s{S_T0}, s{S_A1}, 10
    s_add_u32 s{S_T0}, s{S_T0}, s{S_H}
    s_lshl_b32 s{S_T0}, s{S_T0}, 2
    s_add_u32 s{S_T0}, s{S_T0}, {FLAG_E}
    v_mov_b32 v{V_T1}, s{S_T0}
    ''')
    spin_ge(a,V_T1,1,L_abort,sleep=2)
    a(f'''
    s_mul_i32 s{S_T0}, s{S_A1}, {640*8}
    s_add_u32 s{S_T0}, s{S_T0}, {WS_E}
    v_lshlrev_b32 v{V_T0}, 3, v{PIDX}
    buffer_load_dwordx2 v[{ER}:{EI}], v{V_T0}, {WSR}, s{S_T0} offen sc1
    ''')
    cmul(a,SR,SI,SR,SI,L128R,L128I,TP)
    a(f'''
    s_waitcnt vmcnt(0)
    v_add_f32 v{SR}, v{SR}, v{ER}
    v_add_f32 v{SI}, v{SI}, v{EI}
    s_add_u32 s{S_A1}, s{S_A1}, 1
    s_branch {Ll}
    {Le}:
    ''')
    a.flush()
    a(f'v_mov_b32 v{HR}, v{SR}\nv_mov_b32 v{HI}, v{SI}')
    for g in range(3):
        cmul(a,SR,SI,SR,SI,L32R,L32I,TP)
        a(f'v_add_f32 v{SR}, v{SR}, v{EG+2*g}\nv_add_f32 v{SI}, v{SI}, v{EG+2*g+1}')
        a(f'v_cmp_eq_u32 vcc, {g+1}, v{V_G}')
        a(f'v_cndmask_b32 v{HR}, v{HR}, v{SR}, vcc\nv_cndmask_b32 v{HI}, v{HI}, v{SI}, vcc')
    scan(True)
    a(f'''
    s_lshl_b32 s{S_T0}, s{S_W}, 4
    v_add_u32 v{V_T0}, s{S_T0}, v{V_N}
    v_mul_u32_u24 v{V_T0}, 272, v{V_T0}
    v_lshl_add_u32 v{V_T0}, v{V_G}, 6, v{V_T0}
    ''')
    for part in range(2):
        for q in range(4):
            d=V_FR+4*((part*4+q)%8)
            for hh in range(2):
                aa=2*q+hh
                a(f'v_cvt_pk_bf16_f32 v{d+2*hh}, v{X(aa,part,0)}, v{X(aa,part,1)}')
                a(f'v_cvt_pk_bf16_f32 v{d+2*hh+1}, v{X(aa,part,2)}, v{X(aa,part,3)}')
            a(f'ds_write_b128 v{V_T0}, v[{d}:{d+3}] offset:{part*64*272+16*q}')
    a('s_waitcnt lgkmcnt(0)\ns_barrier')
    a(f'''
    v_lshrrev_b32 v{V_T0}, 2, v{V_N}
    v_lshl_add_u32 v{V_T0}, v{V_G}, 3, v{V_T0}
    v_mul_u32_u24 v{V_T0}, 272, v{V_T0}
    v_and_b32 v{V_T1}, 3, v{V_N}
    v_lshl_add_u32 v{V_T0}, v{V_T1}, 3, v{V_T0}
    s_lshl_b32 s{S_T0}, s{S_W}, 6
    v_add_u32 v{V_T0}, s{S_T0}, v{V_T0}
    s_lshl_b32 s{S_T0}, s{S_B}, 3
    s_lshl_b32 s{S_T1}, s{S_W}, 1
    s_add_u32 s{S_T0}, s{S_T0}, s{S_T1}
    s_mul_i32 s{S_T0}, s{S_T0}, 40
    s_lshl_b32 s{S_T1}, s{S_H}, 1
    s_add_u32 s{S_T0}, s{S_T0}, s{S_T1}
    s_lshl_b32 s{S_T0}, s{S_T0}, 10
    s_add_u32 s{S_T0}, s{S_T0}, {WS_H}
    ''')
    n=0
    for tl in range(2):
        for part in range(2):
            for kk in range(2):
                d=V_FR+4*(n%8); n+=1
                for u in range(2):
                    off=(part*64+32*kk+4*u)*272+32*tl
                    a(f'ds_read_b64_tr_b16 v[{d+2*u}:{d+2*u+1}], v{V_T0} offset:{off}')
                a('s_waitcnt lgkmcnt(0)')
                a(f's_add_u32 s{S_T1}, s{S_T0}, {(tl*40+part*20+kk)*1024}')
                a(f'buffer_store_dwordx4 v[{d}:{d+3}], v{V_L16}, {WSR}, s{S_T1} offen sc1')
    a(f's_lshl_b32 s{S_T0}, s{S_B}, 2\ns_add_u32 s{S_A0}, s{S_T0}, {FLAG_H}')
    signal_add(a,S_A0)
    a(f's_branch {L_next}')

def task_g2(a, L_next, L_abort):
    ensure_zero(a)
    a(f's_lshl_b32 s{S_T0}, s{S_B}, 2\ns_add_u32 s{S_T0}, s{S_T0}, {FLAG_H}\nv_mov_b32 v{V_T1}, s{S_T0}')
    spin_ge(a,V_T1,10,L_abort)
    srd(a,S_R,'C_re',640*1280)
    a(f'''
    s_mov_b32 s{S_C}, s{S_WS}
    s_mov_b32 s{S_C+1}, s{S_WS+1}
    s_mov_b32 s{S_C+2}, s{S_WS+2}
    s_mov_b32 s{S_C+3}, 0x20000
    ''')
    dma_addr_N(a,V_RD,1280)
    a(f'v_mov_b32 v{V_CD}, v{V_L16}')
    a(f'v_add_u32 v{V_CD+1}, 1024, v{V_L16}')
    a(f'v_add_u32 v{V_CD+2}, {40*1024}, v{V_L16}')
    a(f'v_add_u32 v{V_CD+3}, {41*1024}, v{V_L16}')
    a(f'''
    s_mul_i32 s{S_RO}, s{S_H}, {128*1280}
    s_mov_b32 s{S_A3}, s{S_RO}
    s_lshl_b32 s{S_T0}, s{S_B}, 3
    s_lshl_b32 s{S_T1}, s{S_W}, 1
    s_add_u32 s{S_T0}, s{S_T0}, s{S_T1}
    s_mul_i32 s{S_T0}, s{S_T0}, {40*1024}
    s_add_u32 s{S_CO}, s{S_T0}, {WS_H}
    s_mov_b32 s{S_RINC}, 128
    s_mov_b32 s{S_CINC}, 2048
    s_lshr_b32 s{S_A0}, s{S_W}, 1
    s_and_b32 s{S_A1}, s{S_W}, 1
    s_lshl_b32 s{S_A2}, s{S_A0}, 6
    ''')
    read_addr_N(a,V_RA,S_A2,0)
    a(f's_lshl_b32 s{S_T0}, s{S_A1}, 13\ns_add_u32 s{S_T0}, s{S_T0}, 16384\nv_add_u32 v{V_CA}, s{S_T0}, v{V_L16}')
    def sw(a):
        a(f'''
        s_load_dwordx2 s[4:5], s[0:1], {KA['C_im']}
        s_waitcnt lgkmcnt(0)
        s_mov_b32 s{S_R}, s4
        s_mov_b32 s{S_R+1}, s5
        s_mov_b32 s{S_RO}, s{S_A3}
        ''')
    gemm_loop(a,'G2',20,4,4,'N','F','RC',switch_at=10,switch_code=sw)
    srd(a,S_R,'B_x',2048*1280)
    srd(a,S_C,'Dskip',1280)
    srd(a,S_OUT,'out',2048*5120)
    a(f'''
    s_lshl_b32 s{S_T0}, s{S_B}, 7
    s_lshl_b32 s{S_T1}, s{S_A1}, 6
    s_add_u32 s{S_T0}, s{S_T0}, s{S_T1}
    v_add_u32 v{V_T0}, s{S_T0}, v{V_N}              ; t (cb=0)
    s_lshl_b32 s{S_T0}, s{S_H}, 7
    s_lshl_b32 s{S_T1}, s{S_A0}, 6
    s_add_u32 s{S_T0}, s{S_T0}, s{S_T1}
    v_lshlrev_b32 v{V_T1}, 2, v{V_G}
    v_add_u32 v{V_T1}, s{S_T0}, v{V_T1}             ; d (ra=0)
    v_lshlrev_b32 v{V_T2}, 1, v{V_T1}               ; d*2
    v_mul_u32_u24 v{V_T3}, 1280, v{V_T0}
    v_add_u32 v{V_T3}, v{V_T3}, v{V_T2}             ; x offset
    v_mul_u32_u24 v{V_T4}, 5120, v{V_T0}
    v_lshl_add_u32 v{V_T4}, v{V_T1}, 2, v{V_T4}
    v_add_u32 v{V_T4}, 2560, v{V_T4}
    ''')
    DS=V_FR; XV=V_FR+8
    for ra in range(4):
        a(f'buffer_load_dwordx2 v[{DS+2*ra}:{DS+2*ra+1}], v{V_T2}, s[{S_C}:{S_C+3}], 0 offen offset:{32*ra}')
    for cb in range(4):
        a(f's_mov_b32 s{S_T0}, {cb*16*1280}')
        for ra in range(4):
            a(f'buffer_load_dwordx2 v[{XV+2*(cb*4+ra)}:{XV+2*(cb*4+ra)+1}], v{V_T3}, s[{S_R}:{S_R+3}], s{S_T0} offen offset:{32*ra}')
    a('s_waitcnt vmcnt(0)')
    DF=V_FR+48
    for ra in range(4):
        for hh in range(2):
            a(f'v_lshlrev_b32 v{DF+4*ra+2*hh}, 16, v{DS+2*ra+hh}')
            a(f'v_and_b32 v{DF+4*ra+2*hh+1}, 0xffff0000, v{DS+2*ra+hh}')
    for cb in range(4):
        a(f's_mov_b32 s{S_T0}, {cb*16*5120}')
        for ra in range(4):
            acc=V_ACC+(ra*4+cb)*4; x=XV+2*(cb*4+ra)
            for hh in range(2):
                a(f'v_lshlrev_b32 v{V_T5}, 16, v{x+hh}')
                a(f'v_and_b32 v{V_T6}, 0xffff0000, v{x+hh}')
                a(f'v_fma_f32 v{acc+2*hh}, v{V_T5}, v{DF+4*ra+2*hh}, v{acc+2*hh}')
                a(f'v_fma_f32 v{acc+2*hh+1}, v{V_T6}, v{DF+4*ra+2*hh+1}, v{acc+2*hh+1}')
            a(f'buffer_store_dwordx4 v[{acc}:{acc+3}], v{V_T4}, s[{S_OUT}:{S_OUT+3}], s{S_T0} offen offset:{64*ra}')
    a('s_waitcnt vmcnt(0)')
    a(f's_branch {L_next}')

def task_att(a, L_next, L_abort):
    ensure_zero(a)
    wstamp(a,0)
    Q=32; K=64; KM=96; V=112; VM=144
    SM=152; S0=156; S1=160; P1=164; P2=168; MX=170; SUM=171; O=172; OB=204; Z0=212
    a(f'''
    s_lshl_b32 s{S_A0}, s{S_H}, 2
    s_add_u32 s{S_A0}, s{S_A0}, s{S_W}          ; head
    s_lshr_b32 s{S_T0}, s{S_B}, 2
    s_lshl_b32 s{S_T0}, s{S_T0}, 5
    s_add_u32 s{S_T0}, s{S_T0}, s{S_A0}
    s_lshl_b32 s{S_A1}, s{S_T0}, 2
    s_add_u32 s{S_T0}, s{S_A1}, {FLAG_Q}
    v_mov_b32 v{V_T1}, s{S_T0}
    ''')
    spin_ge(a,V_T1,1,L_abort)
    a(f's_add_u32 s{S_T0}, s{S_A1}, {FLAG_KV}\nv_mov_b32 v{V_T1}, s{S_T0}')
    spin_ge(a,V_T1,2,L_abort)
    a(f'''
    s_lshl_b32 s{S_T0}, s{S_B}, 5
    s_add_u32 s{S_T0}, s{S_T0}, s{S_A0}         ; s*32+h
    s_lshl_b32 s{S_A1}, s{S_T0}, 13
    s_add_u32 s{S_A2}, s{S_A1}, {WS_QX}
    s_add_u32 s{S_A3}, s{S_A2}, 4096
    ''')
    for i in range(8):
        a(f'buffer_load_dwordx4 v[{Q+4*i}:{Q+4*i+3}], v{V_L16}, {WSR}, s{S_A2+(i>>2)} offen offset:{1024*(i&3)} sc1')
    a(f's_add_u32 s{S_A2}, s{S_A1}, {WS_KX}\ns_add_u32 s{S_A3}, s{S_A2}, 4096')
    for i in range(8):
        a(f'buffer_load_dwordx4 v[{K+4*i}:{K+4*i+3}], v{V_L16}, {WSR}, s{S_A2+(i>>2)} offen offset:{1024*(i&3)} sc1')
    a(f's_add_u32 s{S_A2}, s{S_A1}, {WS_VX}\ns_add_u32 s{S_A3}, s{S_A2}, 4096')
    for i in range(8):
        a(f'buffer_load_dwordx4 v[{V+4*i}:{V+4*i+3}], v{V_L16}, {WSR}, s{S_A2+(i>>2)} offen offset:{1024*(i&3)} sc1')
    a(f's_add_u32 s{S_K}, s{S_B}, 1')
    for x in range(2):
        a(f'''
        s_lshl_b32 s{S_T0}, s{S_A0}, 7
        s_add_u32 s{S_T0}, s{S_T0}, {FLAG_M+64*x}
        v_mov_b32 v{V_T1}, s{S_T0}
        ''')
        spin_ge(a,V_T1,f's{S_K}',L_abort,sleep=16)
    a(f'''
    s_lshl_b32 s{S_T0}, s{S_B}, 5
    s_add_u32 s{S_T0}, s{S_T0}, s{S_A0}
    s_lshl_b32 s{S_T1}, s{S_T0}, 12
    s_add_u32 s{S_A2}, s{S_T1}, {WS_KM}
    s_lshl_b32 s{S_T1}, s{S_T0}, 11
    s_add_u32 s{S_A3}, s{S_T1}, {WS_VM}
    v_lshlrev_b32 v{V_T0}, 3, v{V_L}
    ''')
    for i in range(4):
        a(f'buffer_load_dwordx4 v[{KM+4*i}:{KM+4*i+3}], v{V_L16}, {WSR}, s{S_A2} offen offset:{1024*i} sc1')
    for i in range(4):
        a(f'buffer_load_dwordx2 v[{VM+2*i}:{VM+2*i+1}], v{V_T0}, {WSR}, s{S_A3} offen offset:{512*i} sc1')
    wstamp(a,1)
    a(f's_mov_b32 s{S_M1}, 0x3e0293ee\ns_mov_b32 s{S_M1+1}, 0x3e0293ee')
    a(f'v_mov_b32 v{P2+1}, 0\nv_mov_b32 v{Z0+1}, 0')
    a(f'v_lshlrev_b32 v{V_T2}, 2, v{V_G}\nv_sub_u32 v{V_T2}, v{V_N}, v{V_T2}')
    a(f'v_mov_b32 v{V_T3}, 0xf149f2ca')
    a('s_waitcnt vmcnt(0)')
    wstamp(a,2)
    for Y in range(2):
        for ks in range(4):
            B=f'v[{Q+16*Y+4*ks}:{Q+16*Y+4*ks+3}]'
            c=lambda d: ('0' if ks==0 else f'v[{d}:{d+3}]')
            a(f'v_mfma_f32_16x16x32_bf16 v[{S0}:{S0+3}], v[{K+4*ks}:{K+4*ks+3}], {B}, {c(S0)}')
            if Y==1: a(f'v_mfma_f32_16x16x32_bf16 v[{S1}:{S1+3}], v[{K+16+4*ks}:{K+16+4*ks+3}], {B}, {c(S1)}')
            a(f'v_mfma_f32_16x16x32_bf16 v[{SM}:{SM+3}], v[{KM+4*ks}:{KM+4*ks+3}], {B}, {c(SM)}')
        diag=S0 if Y==0 else S1
        for r in range(4):
            a(f'v_cmp_ge_i32 vcc, v{V_T2}, {r}' if False else f'v_cmp_le_i32 vcc, {r}, v{V_T2}')
            a(f'v_cndmask_b32 v{diag+r}, v{V_T3}, v{diag+r}, vcc')
        vals=[S0,S0+1,S0+2,S0+3]+([S1,S1+1,S1+2,S1+3] if Y==1 else [])+[SM,SM+1]
        a(f'v_max_f32 v{MX}, v{SM}, v{SM+1}')
        for v in vals[:-2]: a(f'v_max_f32 v{MX}, v{MX}, v{v}')
        a(f'v_mov_b32 v{V_T4}, v{MX}')
        a(f'v_permlane16_swap_b32 v{MX}, v{V_T4}')
        a(f'v_max_f32 v{MX}, v{MX}, v{V_T4}')
        a(f'v_mov_b32 v{V_T4}, v{MX}')
        a(f'v_permlane32_swap_b32 v{MX}, v{V_T4}')
        a(f'v_max_f32 v{MX}, v{MX}, v{V_T4}')
        a(f'v_mul_f32 v{MX}, s{S_M1}, v{MX}')
        for v in vals: a(f'v_fma_f32 v{v}, v{v}, s{S_M1}, -v{MX}')
        for v in vals: a(f'v_exp_f32 v{v}, v{v}')
        a(f'v_cvt_pk_bf16_f32 v{P1}, v{S0}, v{S0+1}')
        a(f'v_cvt_pk_bf16_f32 v{P1+1}, v{S0+2}, v{S0+3}')
        if Y==1:
            a(f'v_cvt_pk_bf16_f32 v{P1+2}, v{S1}, v{S1+1}')
            a(f'v_cvt_pk_bf16_f32 v{P1+3}, v{S1+2}, v{S1+3}')
        else:
            a(f'v_mov_b32 v{P1+2}, 0\nv_mov_b32 v{P1+3}, 0')
        a(f'v_cvt_pk_bf16_f32 v{P2}, v{SM}, v{SM+1}')
        a(f'v_add_f32 v{SUM}, v{vals[0]}, v{vals[1]}')
        for v in vals[2:]: a(f'v_add_f32 v{SUM}, v{SUM}, v{v}')
        a(f'v_mov_b32 v{V_T4}, v{SUM}')
        a(f'v_permlane16_swap_b32 v{SUM}, v{V_T4}')
        a(f'v_add_f32 v{SUM}, v{SUM}, v{V_T4}')
        a(f'v_mov_b32 v{V_T4}, v{SUM}')
        a(f'v_permlane32_swap_b32 v{SUM}, v{V_T4}')
        a(f'v_add_f32 v{SUM}, v{SUM}, v{V_T4}')
        a(f'v_rcp_f32 v{SUM}, v{SUM}')
        for T in range(8):
            a(f'v_mfma_f32_16x16x32_bf16 v[{O+4*T}:{O+4*T+3}], v[{V+4*T}:{V+4*T+3}], v[{P1}:{P1+3}], 0')
        for T in range(8):
            a(f'v_mov_b32 v{Z0}, v{VM+T}')
            a(f'v_mfma_f32_16x16x16_bf16 v[{O+4*T}:{O+4*T+3}], v[{Z0}:{Z0+1}], v[{P2}:{P2+1}], v[{O+4*T}:{O+4*T+3}]')
        a(f'''
        s_lshl_b32 s{S_T0}, s{S_B}, 1
        s_add_u32 s{S_T0}, s{S_T0}, {Y}
        s_lshl_b32 s{S_T0}, s{S_T0}, 7
        s_lshl_b32 s{S_T1}, s{S_A0}, 2
        s_add_u32 s{S_T0}, s{S_T0}, s{S_T1}
        s_lshl_b32 s{S_T0}, s{S_T0}, 10
        s_add_u32 s{S_T0}, s{S_T0}, {WS_O}
        ''')
        for k2 in range(4):
            d=OB+4*(k2&1)
            for hh in range(2):
                o=O+4*(2*k2+hh)
                for r in range(4): a(f'v_mul_f32 v{o+r}, v{o+r}, v{SUM}')
                a(f'v_cvt_pk_bf16_f32 v{d+2*hh}, v{o}, v{o+1}')
                a(f'v_cvt_pk_bf16_f32 v{d+2*hh+1}, v{o+2}, v{o+3}')
            a(f'buffer_store_dwordx4 v[{d}:{d+3}], v{V_L16}, {WSR}, s{S_T0} offen offset:{1024*k2} sc1')
    wstamp(a,3)
    a(f's_lshl_b32 s{S_T0}, s{S_B}, 2\ns_add_u32 s{S_A0}, s{S_T0}, {FLAG_O}')
    signal_add(a,S_A0)
    wstamp(a,4)
    wstamp_store(a,5,160)
    a(f's_branch {L_next}')

def role_proj(a, L_exit, L_abort):
    worker_consts(a)
    srd(a,S_R,'Wo',4096*1280)
    srd(a,S_OUT,'out',2048*5120)
    a(f'''
    s_lshl_b32 s{S_ST}, s{S_W}, 15
    v_lshrrev_b32 v{V_T0}, 2, v{V_L}
    v_mul_u32_u24 v{V_T0}, 1280, v{V_T0}
    v_and_b32 v{V_T1}, 3, v{V_L}
    v_lshl_add_u32 v{V_RD}, v{V_T1}, 4, v{V_T0}
    s_mul_i32 s{S_RO}, s{S_W}, {1024*1280}
    s_lshl_b32 s{S_T0}, s{S_H}, 6
    s_add_u32 s{S_RO}, s{S_RO}, s{S_T0}
    v_lshrrev_b32 v{V_T0}, 2, v{V_N}
    v_lshl_add_u32 v{V_T0}, v{V_G}, 2, v{V_T0}
    v_lshlrev_b32 v{V_T0}, 6, v{V_T0}
    v_and_b32 v{V_T1}, 3, v{V_N}
    v_lshl_add_u32 v{V_T0}, v{V_T1}, 3, v{V_T0}
    v_add_u32 v{V_RA}, s{S_ST}, v{V_T0}
    ''')
    for bt in range(2):
        for i in range(32):
            a(f's_add_u32 m0, s{S_ST}, {1024*i}')
            a(f's_add_u32 s{S_T1}, s{S_RO}, {(bt*512+16*i)*1280}')
            a(f'buffer_load_dwordx4 v{V_RD}, s[{S_R}:{S_R+3}], s{S_T1} offen lds')
        a('s_waitcnt vmcnt(0)')
        for kk in range(16):
            for ct in range(2):
                d=((bt*16+kk)*2+ct)*4
                for u in range(2):
                    a(f'ds_read_b64_tr_b16 a[{d+2*u}:{d+2*u+1}], v{V_RA} offset:{(32*kk+16*u)*64+32*ct}')
        a('s_waitcnt lgkmcnt(0)')
    a('s_barrier')
    ACC=32; FR=64
    a(f'''
    s_lshr_b32 s{S_A0}, s{S_W}, 1
    s_and_b32 s{S_A1}, s{S_W}, 1
    s_lshl_b32 s{S_T0}, s{S_A0}, 4
    v_add_u32 v{V_T0}, s{S_T0}, v{V_N}
    v_mul_u32_u24 v{V_T0}, 5120, v{V_T0}
    s_lshl_b32 s{S_T0}, s{S_H}, 5
    s_lshl_b32 s{S_T1}, s{S_A1}, 4
    s_add_u32 s{S_T0}, s{S_T0}, s{S_T1}
    v_lshlrev_b32 v{V_T1}, 2, v{V_G}
    v_add_u32 v{V_T1}, s{S_T0}, v{V_T1}
    v_lshl_add_u32 v{V_CD}, v{V_T1}, 2, v{V_T0}
    s_lshl_b32 s{S_T0}, s{S_W}, 12
    v_add_u32 v{V_CD+1}, s{S_T0}, v{V_L16}
    s_lshl_b32 s{S_T0}, s{S_W}, 10
    v_add_u32 v{V_CD+2}, s{S_T0}, v{V_L16}
    s_mov_b32 s{S_K}, s{S_B}
    ''')
    ensure_zero(a)
    L=a.newlabel('L_proj'); a(f'{L}:'); a.flush()
    a(f's_lshl_b32 s{S_T0}, s{S_K}, 2\ns_add_u32 s{S_T0}, s{S_T0}, {FLAG_O}\nv_mov_b32 v{V_T1}, s{S_T0}')
    wstamp(a,0)
    spin_ge(a,V_T1,8,L_abort,sleep=8)
    wstamp(a,1)
    a(f'''
    s_lshl_b32 s{S_T0}, s{S_K}, 8
    s_lshl_b32 s{S_T1}, s{S_W}, 5
    s_add_u32 s{S_T0}, s{S_T0}, s{S_T1}
    s_lshl_b32 s{S_T0}, s{S_T0}, 10
    s_add_u32 s{S_A2}, s{S_T0}, {WS_O}
    s_add_u32 s{S_A3}, s{S_A2}, {128*1024}
    ''')
    def ld(kk):
        for tt in range(2):
            d=FR+((kk%8)*2+tt)*4
            a(f's_add_u32 s{S_T0}, s{S_A2+tt}, {(kk>>2)*4096}')
            a(f'buffer_load_dwordx4 v[{d}:{d+3}], v{V_L16}, {WSR}, s{S_T0} offen offset:{(kk&3)*1024} sc1')
    for kk in range(7): ld(kk)
    for kk in range(32):
        if kk+7<32: ld(kk+7)
        rem=min(7,31-kk)
        a(f's_waitcnt vmcnt({2*rem})')
        for tt in range(2):
            for ct in range(2):
                acc=ACC+(tt*2+ct)*4; B=FR+((kk%8)*2+tt)*4; A=(kk*2+ct)*4
                c='0' if kk==0 else f'v[{acc}:{acc+3}]'
                a(f'v_mfma_f32_16x16x32_bf16 v[{acc}:{acc+3}], a[{A}:{A+3}], v[{B}:{B+3}], {c}')
    wstamp(a,2)
    for t in range(4):
        a(f'ds_write_b128 v{V_CD+1}, v[{ACC+4*t}:{ACC+4*t+3}] offset:{1024*t}')
    a('s_waitcnt lgkmcnt(0)\ns_barrier')
    for sw in range(4):
        a(f'ds_read_b128 v[{FR+4*sw}:{FR+4*sw+3}], v{V_CD+2} offset:{4096*sw}')
    a('s_waitcnt lgkmcnt(0)')
    for r in range(0,4,2):
        a(f'v_pk_add_f32 v[{FR+r}:{FR+r+1}], v[{FR+r}:{FR+r+1}], v[{FR+4+r}:{FR+5+r}]')
        a(f'v_pk_add_f32 v[{FR+8+r}:{FR+9+r}], v[{FR+8+r}:{FR+9+r}], v[{FR+12+r}:{FR+13+r}]')
        a(f'v_pk_add_f32 v[{FR+r}:{FR+r+1}], v[{FR+r}:{FR+r+1}], v[{FR+8+r}:{FR+9+r}]')
    a(f'''
    s_mul_i32 s{S_T0}, s{S_K}, {32*5120}
    buffer_store_dwordx4 v[{FR}:{FR+3}], v{V_CD}, s[{S_OUT}:{S_OUT+3}], s{S_T0} offen
    s_barrier
    ''')
    wstamp(a,3)
    wstamp_store(a,4,192)
    a(f'''
    s_add_u32 s{S_K}, s{S_K}, 2
    s_cmp_lt_u32 s{S_K}, 64
    s_cbranch_scc1 {L}
    s_waitcnt vmcnt(0)
    s_branch {L_exit}
    ''')

def probe_parity(a, L_abort):
    worker_consts(a)
    lab=a.newlabel('L_noprobe')
    a(f'''
    s_cmp_lg_u32 s{S_W}, 0
    s_cbranch_scc1 {lab}
    s_sub_u32 s{S_T0}, 0, s{S_WS}
    s_and_b32 s{S_T0}, s{S_T0}, 0x1fffff
    s_add_u32 s{S_A0}, s{S_T0}, {WS_X+3840}
    s_mov_b32 s{S_A1}, -1
    s_mov_b32 s{S_A2}, -1
    s_mov_b32 s{S_K}, 0
    v_mov_b32 v{V_T0}, 0
    v_mov_b32 v{V_T1}, 0
    s_mov_b64 exec, 1
    ''')
    L=a.newlabel('L_probe')
    a(f'{L}:')
    for p,acc in ((0,S_A1),(1,S_A2)):
        a(f'''
        s_add_u32 s{S_T0}, s{S_A0}, {p*8192}
        s_memtime s[64:65]
        s_waitcnt lgkmcnt(0)
        buffer_store_dword v{V_T1}, v{V_T0}, {WSR}, s{S_T0} offen sc1
        s_waitcnt vmcnt(0)
        s_memtime s[66:67]
        s_waitcnt lgkmcnt(0)
        s_sub_u32 s{S_T1}, s66, s64
        s_min_u32 s{acc}, s{acc}, s{S_T1}
        ''')
    a(f'''
    s_add_u32 s{S_A0}, s{S_A0}, 32768
    s_add_u32 s{S_K}, s{S_K}, 1
    s_cmp_lt_u32 s{S_K}, {XCFG.get('nprobe',8)}
    s_cbranch_scc1 {L}
    s_mov_b64 exec, -1
    s_cmp_le_u32 s{S_A1}, s{S_A2}
    s_cselect_b32 s{S_A3}, 1, 2
    ''')
    ensure_zero(a)
    a(f'''
    v_mov_b32 v{V_T0}, {FLAG_PAR}
    v_mov_b32 v{V_T1}, s{S_A3}
    s_mov_b64 exec, 1
    buffer_store_dword v{V_T1}, v{V_T0}, {WSR}, 0 offen sc1
    ''')
    if XCFG.get('total'):
        a(f'v_mov_b32 v{V_T0}, 248\nv_mov_b32 v{V_T2}, s{S_A1}\nv_mov_b32 v{V_T3}, s{S_A2}\nv_mov_b32 v12, v{V_T2}\nv_mov_b32 v13, v{V_T3}')
        a(f'buffer_store_dwordx2 v[12:13], v{V_T0}, s[{S_DBG}:{S_DBG+3}], 0 offen')
    a(f'''
    s_mov_b64 exec, -1
    s_waitcnt vmcnt(0)
    {lab}:
    ''')

NG1=160; NG2=80; NATT=512
S_J=59; S_JT=60; S_QA=61; S_NH=62; S_PH=63; S_H0=57
def fetch(a, qaddr_sreg):
    lab=a.newlabel('L_fetch')
    a(f'''
    s_barrier
    s_cmp_lg_u32 s{S_W}, 0
    s_cbranch_scc1 {lab}
    v_mov_b32 v{V_T0}, s{qaddr_sreg}
    v_mov_b32 v{V_T1}, 1
    s_mov_b64 exec, 1
    buffer_atomic_add v{V_T1}, v{V_T0}, s[{S_DBG}:{S_DBG+3}], 0 offen sc0
    s_waitcnt vmcnt(0)
    v_mov_b32 v{V_T0}, 163836
    ds_write_b32 v{V_T0}, v{V_T1}
    s_waitcnt lgkmcnt(0)
    s_mov_b64 exec, -1
    {lab}:
    s_barrier
    v_mov_b32 v{V_T0}, 163836
    ds_read_b32 v{V_T1}, v{V_T0}
    s_waitcnt lgkmcnt(0)
    v_readfirstlane_b32 s{S_TASK}, v{V_T1}
    ''')

NB0=4
def per_xcd_phase(a, qbase, L_abort, cfg):
    Ln=a.newlabel('L_kvq_next'); Lq=a.newlabel('L_kvq_q')
    a(f's_mov_b32 s{S_JT}, 0')
    a(f'{Lq}:'); a.flush()
    a(f'''
    s_add_u32 s{S_PH}, s{S_J}, s{S_JT}
    s_sub_u32 s{S_T0}, s{S_PH}, 6
    s_cmp_ge_u32 s{S_PH}, 6
    s_cselect_b32 s{S_PH}, s{S_T0}, s{S_PH}
    s_lshl_b32 s{S_T0}, s{S_PH}, 3
    s_lshl_b32 s{S_T1}, s{S_PH}, 2
    s_add_u32 s{S_T1}, s{S_T1}, 8
    s_cmp_lt_u32 s{S_PH}, 2
    s_cselect_b32 s{S_NH}, 3, 2
    s_cselect_b32 s{S_H0}, s{S_T0}, s{S_T1}
    s_lshl_b32 s{S_QA}, s{S_PH}, 2
    s_add_u32 s{S_QA}, s{S_QA}, {qbase}
    ''')
    a(f'{Ln}:'); a.flush()
    fetch(a,S_QA)
    ldone=a.newlabel('L_kvq_qd'); lB=a.newlabel('L_kvq_B'); lC=a.newlabel('L_kvq_C'); lv=a.newlabel('L_isV')
    def divmod_nh(extra):
        a(f'''
        s_add_u32 s{S_T1}, s{S_NH}, {extra}
        s_lshr_b32 s{S_B}, s{S_TASK}, s{S_T1}
        s_lshl_b32 s{S_T0}, s{S_B}, s{S_T1}
        s_sub_u32 s{S_T0}, s{S_TASK}, s{S_T0}
        ''')
    a(f's_lshl_b32 s{S_T0}, {2*NB0}, s{S_NH}\ns_cmp_ge_u32 s{S_TASK}, s{S_T0}\ns_cbranch_scc1 {lB}')
    divmod_nh(1)
    a(f'''
    s_lshr_b32 s{S_T1}, s{S_T0}, 1
    s_add_u32 s{S_H}, s{S_T1}, s{S_H0}
    s_bitcmp1_b32 s{S_T0}, 0
    s_cbranch_scc1 {lv}
    ''')
    task_kqv(a,'K',Ln,L_abort)
    a(f'{lv}:'); a.flush()
    task_kqv(a,'V',Ln,L_abort)
    a(f'{lB}:'); a.flush()
    a(f's_sub_u32 s{S_TASK}, s{S_TASK}, s{S_T0}\ns_lshl_b32 s{S_T0}, {NB0}, s{S_NH}\ns_cmp_ge_u32 s{S_TASK}, s{S_T0}\ns_cbranch_scc1 {lC}')
    divmod_nh(0)
    a(f's_add_u32 s{S_H}, s{S_T0}, s{S_H0}')
    task_kqv(a,'Q',Ln,L_abort)
    a(f'{lC}:'); a.flush()
    a(f's_sub_u32 s{S_TASK}, s{S_TASK}, s{S_T0}\ns_lshl_b32 s{S_T0}, {16-NB0}, s{S_NH}\ns_cmp_ge_u32 s{S_TASK}, s{S_T0}\ns_cbranch_scc1 {ldone}')
    divmod_nh(0)
    a(f's_add_u32 s{S_B}, s{S_B}, {NB0}\ns_add_u32 s{S_H}, s{S_T0}, s{S_H0}')
    task_kvq(a,Ln,L_abort)
    a(f'{ldone}:'); a.flush()
    a(f'''
    s_add_u32 s{S_JT}, s{S_JT}, 1
    s_cmp_lt_u32 s{S_JT}, 6
    s_cbranch_scc1 {Lq}
    ''')

def global_phase(a, nm, qaddr, n, L_abort):
    Ln=a.newlabel(f'L_{nm}_next'); ld=a.newlabel(f'L_{nm}_done')
    a(f's_mov_b32 s{S_QA}, {qaddr}')
    a(f'{Ln}:'); a.flush()
    a(f's_mov_b32 s{S_QA}, {qaddr}')
    fetch(a,S_QA)
    a(f's_cmp_ge_u32 s{S_TASK}, {n}\ns_cbranch_scc1 {ld}')
    if nm=='G1':
        a(f's_mul_i32 s{S_B}, s{S_TASK}, 6554\ns_lshr_b32 s{S_B}, s{S_B}, 16\ns_mul_i32 s{S_T0}, s{S_B}, 10\ns_sub_u32 s{S_H}, s{S_TASK}, s{S_T0}')
        task_g1(a,Ln,L_abort)
    elif nm=='G2':
        a(f's_mul_i32 s{S_B}, s{S_TASK}, 13108\ns_lshr_b32 s{S_B}, s{S_B}, 16\ns_mul_i32 s{S_T0}, s{S_B}, 5\ns_sub_u32 s{S_H}, s{S_TASK}, s{S_T0}')
        task_g2(a,Ln,L_abort)
    elif nm.startswith('ATT'):
        a(f's_lshr_b32 s{S_B}, s{S_TASK}, 3\ns_and_b32 s{S_H}, s{S_TASK}, 7')
        task_att(a,Ln,L_abort)
    a(f'{ld}:'); a.flush()

def role_att(a, L_exit, L_abort, cfg):
    worker_consts(a)
    global_phase(a,'ATT2',DBG_QUEUE+56,NATT,L_abort)
    a(f's_branch {L_exit}')

def role_generic(a, L_exit, L_abort, cfg):
    worker_consts(a)
    order=cfg.get('order',['KV','G1','G2','ATT'])
    for nm in order:
        if nm=='KV': per_xcd_phase(a,DBG_QUEUE,L_abort,cfg)
        elif nm=='Q': pass
        elif nm=='G1': global_phase(a,'G1',DBG_QUEUE+48,NG1,L_abort)
        elif nm=='G2': global_phase(a,'G2',DBG_QUEUE+52,NG2,L_abort)
        elif nm=='ATT': global_phase(a,'ATT',DBG_QUEUE+56,NATT,L_abort)
    a(f's_branch {L_exit}')
```

```python
import sys
from asm import *
from layout import *
import chain3 as chain
import workers as W

NAME='concat_heads__memory_aug_recurrent_mem_tr__ssm_conv_s5__prompt_kernel'
def build(cfg, name=NAME):
    W.XCFG.update(cfg)
    a=Asm()
    a(f'''
    s_cmp_ge_u32 s2, 256
    s_cbranch_scc1 L_exit
    {'s_memrealtime s[96:97]' if cfg.get('total') else ''}
    s_load_dwordx2 s[4:5], s[0:1], {KA['ws']}
    s_load_dwordx2 s[6:7], s[0:1], {KA['dbg']}
    s_waitcnt lgkmcnt(0)
    s_mov_b32 s8, s4
    s_mov_b32 s9, s5
    s_mov_b32 s10, {WS_SIZE}
    s_mov_b32 s11, 0x20000
    s_mov_b32 s20, s6
    s_mov_b32 s21, s7
    s_mov_b32 s22, 256
    s_mov_b32 s23, 0x20000
    s_getreg_b32 s18, hwreg(HW_REG_XCC_ID, 0, 4)
    v_lshrrev_b32 v1, 6, v0
    s_nop 0
    v_readfirstlane_b32 s3, v1
    s_cmp_lg_u32 s3, 0
    s_cbranch_scc1 L_role_wait
    s_lshl_b32 s3, s2, 6
    s_add_u32 s3, s3, {WS_FLAGS}
    v_lshlrev_b32 v2, 2, v0
    v_mov_b32 v3, 0
    s_mov_b64 exec, 0xffff
    buffer_store_dword v3, v2, s[8:11], s3 offen sc1
    s_mov_b64 exec, 1
    s_lshl_b32 s3, s18, 2
    v_mov_b32 v2, s3
    v_mov_b32 v3, 1
    buffer_atomic_add v3, v2, s[20:23], 0 offen sc0
    s_waitcnt vmcnt(0)
    v_mov_b32 v2, {DBG_ZERO}
    v_mov_b32 v4, 1
    buffer_atomic_add v4, v2, s[20:23], 0 offen
    v_readfirstlane_b32 s17, v3
    s_cmp_ge_u32 s18, 2
    s_cbranch_scc1 L_role_nc
    s_cmp_lt_u32 s17, 32
    s_cbranch_scc1 L_role_put
    L_role_nc:
    v_add_u32 v3, 1000, v3
    s_cmp_lt_u32 s18, 4
    s_cbranch_scc1 L_role_put
    s_cmp_ge_u32 s17, {(cfg.get('nproj',40)+cfg.get('natt',24))//4}
    s_cbranch_scc1 L_role_put
    v_mov_b32 v2, {DBG_ROLE}
    v_mov_b32 v3, 1
    buffer_atomic_add v3, v2, s[20:23], 0 offen sc0
    s_waitcnt vmcnt(0)
    v_add_u32 v3, 64, v3
    L_role_put:
    v_mov_b32 v2, 0
    ds_write_b32 v2, v3
    s_waitcnt lgkmcnt(0)
    s_mov_b64 exec, -1
    L_role_wait:
    s_barrier
    v_mov_b32 v2, 0
    ds_read_b32 v3, v2
    s_waitcnt lgkmcnt(0)
    v_readfirstlane_b32 s17, v3
    s_barrier
    s_cmp_lt_u32 s17, 64
    s_cbranch_scc1 L_chain
    s_sub_u32 s17, s17, 64
    s_mov_b32 s{W.S_SPIN}, {cfg['spin']}
    s_mov_b32 s{W.S_ZOK}, 0
    s_add_u32 s3, s18, 4
    s_sub_u32 s3, s3, 6
    s_cmp_ge_u32 s18, 2
    s_cselect_b32 s3, s3, s18
    s_sub_u32 s{W.S_J}, s18, 2
    s_cmp_ge_u32 s18, 2
    s_cselect_b32 s{W.S_J}, s{W.S_J}, s18
    s_cmp_ge_u32 s17, 500
    s_cbranch_scc1 L_generic
    s_cmp_ge_u32 s17, {cfg.get('nproj',40)}
    s_cbranch_scc1 L_att
    s_mul_i32 s{W.S_B}, s17, 3277
    s_lshr_b32 s{W.S_B}, s{W.S_B}, 16          ; /20
    s_mul_i32 s3, s{W.S_B}, 20
    s_sub_u32 s{W.S_H}, s17, s3
    ''')
    W.role_proj(a,'L_exit','L_w_abort')
    a('L_att:'); a.flush()
    W.role_att(a,'L_exit','L_w_abort',cfg)
    a('L_generic:'); a.flush()
    if cfg.get('autopar'):
        a('s_cmp_lg_u32 s18, 2\ns_cbranch_scc1 L_generic2\ns_cmp_lg_u32 s17, 936+0\ns_cbranch_scc1 L_generic2')
        W.probe_parity(a,'L_w_abort')
        a('L_generic2:'); a.flush()
    W.role_generic(a,'L_exit','L_w_abort',cfg)
    a(f'''
    L_w_abort:
    v_mov_b32 v5, {DBG_ERR}
    v_mov_b32 v6, 256
    s_mov_b64 exec, 1
    buffer_atomic_add v6, v5, s[20:23], 0 offen
    s_waitcnt vmcnt(0)
    s_branch L_exit
    L_chain:
    ''')
    a.flush()
    if cfg.get('nochain'):
        a('s_branch L_exit')
    else:
        chain.chain_all(a,cfg,'L_exit')
    a('L_exit:')
    a('s_endpgm')
    hdr=open('concat_heads__memory_aug_recurrent_mem_tr__ssm_conv_s5__prompt.s.ref').read()
    top=hdr[:hdr.index('; Override launch geometry')]
    head=top+f'; @launch grid=(256,1,1) block=(256,1,1) lds=163840\n.amdgcn_target "amdgcn-amd-amdhsa--gfx950"\n.text\n.globl {name}\n.p2align 8\n.type {name},@function\n{name}:\n'
    tail=f'''.section .rodata,"a"
.p2align 6
.amdhsa_kernel {name}
  .amdhsa_next_free_vgpr 512
  .amdhsa_next_free_sgpr 100
  .amdhsa_accum_offset 256
  .amdhsa_group_segment_fixed_size 0
  .amdhsa_kernarg_size 152
  .amdhsa_user_sgpr_count 2
  .amdhsa_user_sgpr_kernarg_segment_ptr 1
  .amdhsa_system_sgpr_workgroup_id_x 1
.end_amdhsa_kernel
'''
    return head+a.text()+tail, a.nops
DEFAULT=dict(par=0,spin=300000,d_ag=128,d_ag_io=1100,d_x=128,d_xv=128,d_xv_io=32,d_rs=384,d_trk=64,pub_after=3,time=False,
             xvlate=1,dma=3,rs_sets=1,ag_sets=1,full=1,kvflag=2,autopar=1)
if __name__=='__main__':
    cfg=dict(DEFAULT)
    for kv in sys.argv[2:]:
        k,v=kv.split('=')
        cfg[k]=int(v)
    if 'tasks' in cfg:
        cfg['order']=[nm for i,nm in enumerate(['KV','G1','Q','G2','ATT']) if cfg['tasks']>>i&1]
    t,n=build(cfg)
    open(sys.argv[1],'w').write(t)
    print('nops inserted',n,'lines',t.count('\n'),'bytes',len(t))
```
